```python
import torch

def _softmax(x, axis=-1):
    return torch.softmax(x, dim=axis)
def _gelu(x):
    return torch.nn.functional.gelu(x, approximate="tanh")
def _silu(x):
    return torch.nn.functional.silu(x)
def _sigmoid(x):
    return torch.sigmoid(x)
def _layernorm(x, axis=-1, eps=1e-5):
    m = x.mean(dim=axis, keepdim=True)
    v = x.var(dim=axis, keepdim=True, unbiased=False)
    return (x - m) / torch.sqrt(v + eps)
def _scatter_add(tgt, idx, src, axis=0):
    return tgt.clone().index_add_(axis, idx, src)
def _segment_sum(src, seg, n):
    out = torch.zeros((n,) + src.shape[1:], dtype=src.dtype)
    return out.index_add_(0, seg, src)
def _pad(x, pw):
    flat = tuple(v for pair in reversed(pw) for v in pair)
    return torch.nn.functional.pad(x, flat)

kernel_name = 'concat_heads__mha_block__ssm_conv_s4d__prompt'

def setup_inputs():

    _w = (lambda a: (lambda t: t.to(torch.bfloat16) if t.is_floating_point() else t)(torch.as_tensor(a)))
    def _A_setup():
        B, S, D, H = 1, 2048, 640, 32
        return {
            "x": _w((lambda *s: torch.randn(*s, dtype=torch.bfloat16) * 0.2)(B, S, D)),
            "wqkv": _w((lambda *s: torch.randn(*s, dtype=torch.bfloat16) * 0.2)(D, 3 * D)),
            "wo": _w((lambda *s: torch.randn(*s, dtype=torch.bfloat16) * 0.05)(D, D)),
        }
    _A_in = _A_setup()

    def _B_setup():
        Bsz, L, D, N = 1, 2048, 640, 128
        return {
            "u": _w((lambda *s: torch.randn(*s, dtype=torch.bfloat16) * 0.05)(Bsz, L, D)),
            "log_A_real": _w((lambda *s: torch.randn(*s, dtype=torch.bfloat16) * 6.4)(D, N) * 0.5),
            "A_imag": _w((lambda *s: torch.randn(*s, dtype=torch.bfloat16) * 0.1)(D, N) * 3.14),
            "C_real": _w((lambda *s: torch.randn(*s, dtype=torch.bfloat16) * 0.8)(D, N) / N ** 0.5),
            "C_imag": _w((lambda *s: torch.randn(*s, dtype=torch.bfloat16) * 0.8)(D, N) / N ** 0.5),
            "log_dt": _w((lambda *s: torch.randn(*s, dtype=torch.bfloat16) * 0.1)(D) * 0.5 - 4.0),
            "D_skip": _w((lambda *s: torch.randn(*s, dtype=torch.bfloat16) * 0.1)(D)),
        }
    _B_in = _B_setup()

    return {
        "A_x": _A_in["x"],
        "A_wqkv": _A_in["wqkv"],
        "A_wo": _A_in["wo"],
        "B_u": _B_in["u"],
        "B_log_A_real": _B_in["log_A_real"],
        "B_A_imag": _B_in["A_imag"],
        "B_C_real": _B_in["C_real"],
        "B_C_imag": _B_in["C_imag"],
        "B_log_dt": _B_in["log_dt"],
        "B_D_skip": _B_in["D_skip"],
    }

def reference(A_x, A_wqkv, A_wo, B_u, B_log_A_real, B_A_imag, B_C_real, B_C_imag, B_log_dt, B_D_skip):
    def _A_ref(x, wqkv, wo):
        B, S, D = x.shape
        H = 32
        Dh = D // H
        qkv = (lambda x, *d: x.permute(*d))((x @ wqkv).reshape(B, S, 3, H, Dh), 2, 0, 3, 1, 4)
        q, k, v = qkv[0], qkv[1], qkv[2]
        scores = torch.einsum("bhqd,bhkd->bhqk", q, k) * (Dh ** -0.5)
        p = _softmax(scores, axis=-1)
        o = torch.einsum("bhqk,bhkd->bhqd", p, v)
        return (lambda x, *d: x.permute(*d))(o, 0, 2, 1, 3).reshape(B, S, D) @ wo

    def _B_ref(u, log_A_real, A_imag, C_real, C_imag, log_dt, D_skip):
        L = u.shape[1]
        dt = torch.exp(log_dt)
        A = -torch.exp(log_A_real) + 1j * A_imag
        C = (C_real + 1j * C_imag) * dt[:, None]
        pos = (lambda x, dt: x.to(dt))(torch.arange(L), log_dt.dtype)
        P = torch.exp((A * dt[:, None])[:, :, None] * pos[None, None, :])
        K = 2.0 * torch.einsum("dn,dnl->dl", C, P).real
        L2 = 2 * L
        u_t = (lambda x, *d: x.permute(*d))(u, 0, 2, 1)
        Kf = (lambda x, *a, **k: torch.fft.rfft(x.float(), *a, **k))(K, L2)
        Uf = (lambda x, *a, **k: torch.fft.rfft(x.float(), *a, **k))(u_t, L2)
        y = (lambda x, *a, **k: torch.fft.irfft(x, *a, **k).to(torch.bfloat16))(Uf * Kf[None, :, :], L2)[:, :, :L]
        y = (lambda x, *d: x.permute(*d))(y, 0, 2, 1)
        return y + u * D_skip[None, None, :]

    a = _A_ref(A_x, A_wqkv, A_wo)
    b = _B_ref(B_u, B_log_A_real, B_A_imag, B_C_real, B_C_imag, B_log_dt, B_D_skip)
    return torch.concatenate([a, b], axis=-1)
```

```python
import sys, math, struct

NAME = "concat_heads__mha_block__ssm_conv_s4d__prompt"

WS_Q = 0x000000
WS_K = 0x280000
WS_V = 0x500000
V_M, V_H, V_T, V_C = 2176, 4352, 8704, 557056
WS_O = 0x7C0000
WS_UT = 0xA40000
WS_YT = 0xCC0000
WS_FLAG = 0xF40000
WS_SIZE = 0x1000000

LDS_BYTES = 81920
N_MAIN, N_SSM = 256, 160


def f2u(x):
    return struct.unpack("<I", struct.pack("<f", x))[0]


class A:
    def __init__(self):
        self.L = []
        self.uid = 0

    def __call__(self, s):
        for line in s.strip("\n").split("\n"):
            line = line.strip()
            if not line:
                continue
            if line.endswith(":") or line.startswith("."):
                self.L.append(line)
            else:
                self.L.append("    " + line)

    def c(self, s):
        self.L.append("    ; " + s)

    def label(self, p="L"):
        self.uid += 1
        return f"{p}_{self.uid}"

    def text(self):
        return "\n".join(self.L) + "\n"


def vr(b, n=1):
    return f"v{b}" if n == 1 else f"v[{b}:{b+n-1}]"


def sr(b, n=1):
    return f"s{b}" if n == 1 else f"s[{b}:{b+n-1}]"


S_X, S_W, S_WS, S_WO, S_OUT, S_DBG = 8, 12, 16, 20, 24, 28
S_WAVE = 32
S_T = 36
V_LANE = 1


def srd(a, base, nbytes):
    a(f"s_mov_b32 s{base+2}, {nbytes}")
    a(f"s_mov_b32 s{base+3}, 0x20000")


def entry_common(a):
    a("v_lshrrev_b32 v2, 6, v0")
    a(f"v_and_b32 v{V_LANE}, 63, v0")
    a("s_nop 0")
    a(f"v_readfirstlane_b32 s{S_WAVE}, v2")


def main_srds(a):
    a(f"s_load_dwordx2 {sr(S_X,2)}, s[0:1], 0")
    a(f"s_load_dwordx2 {sr(S_W,2)}, s[0:1], 8")
    a(f"s_load_dwordx2 {sr(S_WO,2)}, s[0:1], 16")
    a(f"s_load_dwordx2 {sr(S_OUT,2)}, s[0:1], 80")
    a(f"s_load_dwordx2 {sr(S_DBG,2)}, s[0:1], 88")
    a(f"s_load_dwordx2 {sr(S_WS,2)}, s[0:1], 96")
    srd(a, S_X, 2621440)
    srd(a, S_W, 2457600)
    srd(a, S_WO, 819200)
    srd(a, S_OUT, 5242880)
    srd(a, S_DBG, 256)
    srd(a, S_WS, WS_SIZE)


def phase_g1(a, sc):
    sRB, sCJ, sX, sWo, sT0, sT1, sWM, sWN, sLB = 36, 37, 38, 39, 40, 41, 42, 43, 44
    done = a.label("g1_done")
    a.c("---- G1: tile mapping")
    a(f"""
    s_and_b32 s{sT0}, s2, 7
    s_lshr_b32 s{sT1}, s2, 3
    s_and_b32 s{sRB}, s{sT0}, 1
    s_lshl_b32 s{sRB}, s{sRB}, 3
    s_and_b32 s{sX}, s{sT1}, 7
    s_add_u32 s{sRB}, s{sRB}, s{sX}
    s_lshr_b32 s{sCJ}, s{sT0}, 1
    s_lshl_b32 s{sCJ}, s{sCJ}, 2
    s_lshr_b32 s{sWo}, s{sT1}, 3
    s_add_u32 s{sCJ}, s{sCJ}, s{sWo}
    s_mul_i32 s{sX}, s{sX}, 5
    s_mul_i32 s{sWo}, s{sWo}, 10
    s_add_u32 s{sX}, s{sX}, s{sWo}
    s_lshr_b32 s{sX}, s{sX}, 2
    s_cmp_ge_u32 s{sX}, 10
    s_cselect_b32 s{sT0}, 10, 0
    s_sub_u32 s{sX}, s{sX}, s{sT0}
    s_mul_i32 s{sWo}, s{sX}, 245760
    s_lshl_b32 s{sX}, s{sX}, 7
    s_and_b32 s{sWM}, s{S_WAVE}, 1
    s_lshr_b32 s{sWN}, s{S_WAVE}, 1
    s_lshl_b32 s{sLB}, s{S_WAVE}, 10
    """)
    VX, VW = 4, 8
    XA, XB = 12, 16
    WA, WB = 20, 22
    T = 24
    ACC = 64
    FR = 128
    L = V_LANE
    a(f"""
    v_lshrrev_b32 v{T}, 3, v{L}
    s_lshl_b32 s{sT0}, s{sRB}, 7
    s_lshl_b32 s{sT1}, s{S_WAVE}, 3
    s_add_u32 s{sT0}, s{sT0}, s{sT1}
    v_add_u32 v{T}, s{sT0}, v{T}
    v_mul_u32_u24 v{T}, 1280, v{T}
    v_lshrrev_b32 v{T+1}, 4, v{L}
    s_lshl_b32 s{sT1}, s{S_WAVE}, 2
    v_add_u32 v{T+2}, s{sT1}, v{T+1}
    v_xor_b32 v{T+2}, v{T+2}, v{L}
    v_and_b32 v{T+2}, 7, v{T+2}
    v_lshl_add_u32 v{VX}, v{T+2}, 4, v{T}
    v_add_u32 v{VX+1}, 40960, v{VX}
    v_add_u32 v{VX+2}, 81920, v{VX}
    v_add_u32 v{VX+3}, 122880, v{VX}
    v_add_u32 v{T}, s{sT1}, v{T+1}
    v_mul_u32_u24 v{T}, 3840, v{T}
    v_lshlrev_b32 v{T+2}, 2, v{T+1}
    v_xor_b32 v{T+2}, v{T+2}, v{L}
    v_and_b32 v{T+2}, 15, v{T+2}
    v_lshl_add_u32 v{T}, v{T+2}, 4, v{T}
    s_lshl_b32 s{sT0}, s{sCJ}, 8
    v_add_u32 v{VW}, s{sT0}, v{T}
    v_add_u32 v{VW+1}, 61440, v{VW}
    v_add_u32 v{VW+2}, 122880, v{VW}
    v_add_u32 v{VW+3}, 184320, v{VW}
    s_waitcnt lgkmcnt(0)
    s_cmp_eq_u32 s{sCJ}, 15
    s_cbranch_scc1 {done}
    """)

    def issue_item(n):
        out = []
        slot = n % 5
        isx = (n % 2 == 0)
        for i in range(4):
            g = f"s_add_u32 m0, s{sLB}, {slot*16384 + i*4096}\n"
            g += "s_nop 0\n"
            if isx:
                g += f"buffer_load_dwordx4 v{VX+i}, {sr(S_X,4)}, s{sX} offen lds"
            else:
                g += f"buffer_load_dwordx4 v{VW+i}, {sr(S_W,4)}, s{sWo} offen lds"
            out.append(g)
        if isx:
            out.append(f"s_add_u32 s{sX}, s{sX}, 128\ns_cmp_eq_u32 s{sX}, 1280\ns_cselect_b32 s{sX}, 0, s{sX}")
        else:
            out.append(f"s_add_u32 s{sWo}, s{sWo}, 245760\ns_cmp_eq_u32 s{sWo}, 2457600\ns_cselect_b32 s{sWo}, 0, s{sWo}")
        return out

    for n in range(5):
        for g in issue_item(n):
            a(g)
    a.c("x fragment addresses")
    a(f"""
    v_and_b32 v{T}, 31, v{L}
    v_lshrrev_b32 v{T+1}, 5, v{L}
    v_bfe_u32 v{T+2}, v{L}, 1, 3
    v_xor_b32 v{T+2}, v{T+2}, v{T+1}
    s_lshl_b32 s{sT0}, s{sWM}, 13
    v_lshl_add_u32 v{T}, v{T}, 7, s{sT0}
    """)
    for ks in range(4):
        a(f"v_xor_b32 v{T+3}, {2*ks}, v{T+2}")
        a(f"v_lshl_add_u32 v{XA+ks}, v{T+3}, 4, v{T}")
        a(f"v_add_u32 v{XB+ks}, 0x10000, v{XA+ks}")
    a.c("W fragment addresses")
    a(f"""
    v_bfe_u32 v{T}, v{L}, 2, 2
    v_lshrrev_b32 v{T+1}, 5, v{L}
    v_lshl_add_u32 v{T+1}, v{T+1}, 3, v{T}
    v_lshlrev_b32 v{T+1}, 8, v{T+1}
    v_bfe_u32 v{T+2}, v{L}, 4, 1
    v_lshl_add_u32 v{T+1}, v{T+2}, 5, v{T+1}
    v_and_b32 v{T+2}, 3, v{L}
    v_and_b32 v{T+3}, 1, v{L}
    v_bfe_u32 v{T+4}, v{L}, 1, 1
    v_lshl_add_u32 v{T+3}, v{T+3}, 1, v{T+4}
    s_cmp_ge_u32 s{sCJ}, 10
    s_cselect_b64 vcc, -1, 0
    v_cndmask_b32 v{T+2}, v{T+3}, v{T+2}, vcc
    v_lshl_add_u32 v{T+1}, v{T+2}, 3, v{T+1}
    s_lshl_b32 s{sT0}, s{sWN}, 1
    """)
    for fn in range(2):
        a(f"s_add_u32 s{sT1}, s{sT0}, {fn}")
        a(f"v_xor_b32 v{T+3}, s{sT1}, v{T}")
        a(f"v_lshl_add_u32 v{WA+fn}, v{T+3}, 6, v{T+1}")
        a(f"v_add_u32 v{WB+fn}, 0x10000, v{WA+fn}")

    def xf(ks, tm):
        return FR + ks * 16 + tm * 4

    def wf(ks, fn):
        return FR + ks * 16 + 8 + fn * 4

    def reads(s, ks):
        out = []
        sx, sw = (2 * s) % 5, (2 * s + 1) % 5
        for tm in range(2):
            base, off = (XA, sx * 16384) if sx < 4 else (XB, 0)
            out.append(f"ds_read_b128 {vr(xf(ks,tm),4)}, v{base+ks} offset:{off + tm*4096}")
        for fn in range(2):
            base, off = (WA, sw * 16384) if sw < 4 else (WB, 0)
            for e in range(2):
                out.append(f"ds_read_b64_tr_b16 {vr(wf(ks,fn)+2*e,2)}, v{base+fn} offset:{off + ks*4096 + e*1024}")
        return out

    def mfmas(ks, isv, first):
        out = []
        for fn in range(2):
            for tm in range(2):
                acc = ACC + (fn * 2 + tm) * 16
                A_, B_ = (xf(ks, tm), wf(ks, fn)) if isv else (wf(ks, fn), xf(ks, tm))
                c = "0" if first else vr(acc, 16)
                out.append(f"v_mfma_f32_32x32x16_bf16 {vr(acc,16)}, {vr(A_,4)}, {vr(B_,4)}, {c}")
        return out

    def mainloop(isv):
        for s in range(10):
            issued = min(2 * s + 4, 19)
            a(f"s_waitcnt vmcnt({4*(issued - (2*s+1))})")
            a("s_barrier")
            r0, r1, r2, r3 = (reads(s, k) for k in range(4))
            for x in r0 + r1:
                a(x)
            if s > 0:
                for x in mfmas(3, isv, False):
                    a(x)
            for x in r2[:3]:
                a(x)
            a("s_waitcnt lgkmcnt(9)")
            m = mfmas(0, isv, s == 0)
            rest = r2[3:] + r3
            a(m[0]); [a(x) for x in rest[0:3]]
            a(m[1]); [a(x) for x in rest[3:6]]
            a(m[2]); [a(x) for x in rest[6:9]]
            a(m[3])
            a("s_waitcnt lgkmcnt(12)")
            m = mfmas(1, isv, False)
            a(m[0]); a(m[1])
            g = []
            for n in (2 * s + 5, 2 * s + 6):
                if n <= 19:
                    g += issue_item(n)
            a("s_waitcnt lgkmcnt(0)")
            if g:
                a("s_barrier")
            m = m[2:] + mfmas(2, isv, False)
            per = (len(g) + len(m) - 1) // len(m)
            for i, x in enumerate(m):
                a(x)
                for y in g[i * per:(i + 1) * per]:
                    a(y)
        for x in mfmas(3, isv, False):
            a(x)

    lv = a.label("g1_v")
    a(f"s_cmp_ge_u32 s{sCJ}, 10")
    a(f"s_cbranch_scc1 {lv}")
    mainloop(False)
    a.c("Q/K epilogue")
    qs = (20 ** -0.5) * math.log2(math.e)
    a(f"""
    s_cmp_lt_u32 s{sCJ}, 5
    s_cselect_b32 s{sT0}, {f2u(qs):#x}, 1.0
    s_lshl_b32 s{sT1}, s{sCJ}, 4
    s_lshl_b32 s{sX}, s{sWN}, 3
    s_add_u32 s{sT1}, s{sT1}, s{sX}
    s_lshl_b32 s{sT1}, s{sT1}, 15
    s_lshl_b32 s{sX}, s{sRB}, 11
    s_add_u32 s{sT1}, s{sT1}, s{sX}
    s_lshl_b32 s{sX}, s{sWM}, 10
    s_add_u32 s{sT1}, s{sT1}, s{sX}
    v_and_b32 v{T}, 31, v{L}
    v_lshrrev_b32 v{T+1}, 5, v{L}
    v_lshlrev_b32 v{T+1}, 15, v{T+1}
    v_lshl_add_u32 v{T}, v{T}, 4, v{T+1}
    s_nop 7
    """)
    assert WS_K == WS_Q + 80 * 32768 and WS_Q == 0
    for fn in range(2):
        for tm in range(2):
            acc = ACC + (fn * 2 + tm) * 16
            for half in range(2):
                d = FR + ((fn * 2 + tm) * 2 + half) * 4
                for i in range(8):
                    a(f"v_mul_f32 v{acc+half*8+i}, s{sT0}, v{acc+half*8+i}")
                for i in range(4):
                    a(f"v_cvt_pk_bf16_f32 v{d+i}, v{acc+half*8+2*i}, v{acc+half*8+2*i+1}")
                a(f"s_add_u32 s{sX}, s{sT1}, {(fn*4+half*2)*32768}")
                a(f"buffer_store_dwordx4 {vr(d,4)}, v{T}, {sr(S_WS,4)}, s{sX} offen offset:{tm*512}{sc}")
    a(f"s_branch {done}")
    a(f"{lv}:")
    mainloop(True)
    a.c("V epilogue")
    a(f"""
    s_sub_u32 s{sT1}, s{sCJ}, 10
    s_mul_i32 s{sT1}, s{sT1}, {V_C}
    s_lshl_b32 s{sX}, s{sRB}, 2
    s_mul_i32 s{sX}, s{sX}, {V_T}
    s_add_u32 s{sT1}, s{sT1}, s{sX}
    s_add_u32 s{sT1}, s{sT1}, {WS_V}
    s_mov_b32 s{sT0}, s{sT1}
    s_mul_i32 s{sX}, s{sWM}, {2*V_T}
    s_add_u32 s{sT1}, s{sT1}, s{sX}
    s_lshl_b32 s{sX}, s{sWN}, 10
    s_add_u32 s{sT1}, s{sT1}, s{sX}
    v_and_b32 v{T}, 31, v{L}
    v_lshrrev_b32 v{T+1}, 5, v{L}
    v_mul_u32_u24 v{T+1}, {V_H}, v{T+1}
    v_lshl_add_u32 v{T}, v{T}, 4, v{T+1}
    s_nop 7
    """)
    for fn in range(2):
        for tm in range(2):
            acc = ACC + (fn * 2 + tm) * 16
            for m in range(2):
                d = FR + ((fn * 2 + tm) * 2 + m) * 4
                for i in range(4):
                    a(f"v_cvt_pk_bf16_f32 v{d+i}, v{acc+m*8+2*i}, v{acc+m*8+2*i+1}")
                a(f"s_add_u32 s{sX}, s{sT1}, {tm*V_T}")
                a(f"buffer_store_dwordx4 {vr(d,4)}, v{T}, {sr(S_WS,4)}, s{sX} offen offset:{m*V_M + fn*512}{sc}")
    a.c("ones chunks: wave w writes the 4 rows of token tile w; whole 128B line each (lanes 0..31)")
    a(f"""
    v_lshrrev_b32 v{T}, 3, v{L}
    v_mul_u32_u24 v{T}, {V_M}, v{T}
    v_and_b32 v{T+1}, 7, v{L}
    v_lshl_add_u32 v{T}, v{T+1}, 4, v{T}
    s_mul_i32 s{sX}, s{S_WAVE}, {V_T}
    s_add_u32 s{sX}, s{sX}, s{sT0}
    v_mov_b32 v{T+4}, 0x3f803f80
    v_mov_b32 v{T+5}, 0x3f803f80
    v_mov_b32 v{T+6}, 0x3f803f80
    v_mov_b32 v{T+7}, 0x3f803f80
    s_mov_b32 exec_hi, 0
    buffer_store_dwordx4 {vr(T+4,4)}, v{T}, {sr(S_WS,4)}, s{sX} offen offset:2048{sc}
    s_mov_b32 exec_hi, -1
    """)
    a(f"{done}:")


WO_V = 4


def wo_addr_setup(a):
    T = 10
    L = V_LANE
    a(f"s_lshr_b32 s{S_T}, s2, 3")
    a(f"s_and_b32 s{S_T}, s{S_T}, 7")
    a(f"s_mul_i32 s{S_T}, s{S_T}, 160")
    for q in range(5):
        a(f"""
        v_add_u32 v{T}, {64*q}, v{L}
        v_mul_u32_u24 v{T+1}, 205, v{T}
        v_lshrrev_b32 v{T+1}, 11, v{T+1}
        v_mul_u32_u24 v{T+2}, 10, v{T+1}
        v_sub_u32 v{T+2}, v{T}, v{T+2}
        v_mul_u32_u24 v{T+1}, 1280, v{T+1}
        v_lshl_add_u32 v{T+1}, v{T+2}, 4, v{T+1}
        v_add_u32 v{WO_V+q}, s{S_T}, v{T+1}
        """)


def wo_issue(a, steps_slots):
    ss = list(steps_slots)
    while len(ss) % 4:
        ss.append(ss[-1])
    n = 0
    for r in range(len(ss) // 4):
        grp = ss[4 * r:4 * r + 4]
        ck = sum(k << (8 * w) for w, (k, _) in enumerate(grp))
        cs = sum(s << (8 * w) for w, (_, s) in enumerate(grp))
        a(f"""
        s_lshl_b32 s{S_T}, s{S_WAVE}, 3
        s_lshr_b32 s{S_T+1}, {ck:#x}, s{S_T}
        s_and_b32 s{S_T+1}, s{S_T+1}, 0xff
        s_mul_i32 s{S_T+1}, s{S_T+1}, 40960
        s_lshr_b32 s{S_T+2}, {cs:#x}, s{S_T}
        s_and_b32 s{S_T+2}, s{S_T+2}, 0xff
        s_mul_i32 s{S_T+2}, s{S_T+2}, 5120
        """)
        for q in range(5):
            a(f"s_add_u32 m0, s{S_T+2}, {q*1024}")
            a("s_nop 0")
            a(f"buffer_load_dwordx4 v{WO_V+q}, {sr(S_WO,4)}, s{S_T+1} offen lds")
            n += 1
    return n


WO_EARLY = [(k, k) for k in range(11)]
WO_PRE = [0, 1, 2, 3]
WO_LATE = [(11 + i, s) for i, s in enumerate([11, 12, 13, 14, 15, 0, 1, 2, 3])]
WO_SLOT = dict(WO_EARLY + WO_LATE)
CMB_OFF = 11 * 5120


AT_O, AT_SA, AT_SB, AT_P = 16, 80, 112, 144
AT_Q1, AT_Q2 = 160, 176
AT_KV = 180
AT_VK1, AT_VK2, AT_VV = 9, 10, 11
AT_T = 12
WPRE = 80


def at_setup(a):
    sHP, sRB, sH, sKB, sKN, sVO, sT0, sT1, sO1, sO2, sF1, sF2, sBLK, sKH = range(44, 58)
    L = V_LANE
    T = AT_T
    a.c("---- AT: mapping  hp = 2*xcd + (idx>>4), rb = idx & 15")
    a(f"""
    s_and_b32 s{sT0}, s2, 7
    s_lshr_b32 s{sT1}, s2, 3
    s_lshl_b32 s{sHP}, s{sT0}, 1
    s_lshr_b32 s{sT0}, s{sT1}, 4
    s_add_u32 s{sHP}, s{sHP}, s{sT0}
    s_and_b32 s{sRB}, s{sT1}, 15
    s_and_b32 s{sT0}, s{S_WAVE}, 1
    s_lshr_b32 s{sKH}, s{S_WAVE}, 1
    s_lshl_b32 s{sH}, s{sHP}, 1
    s_add_u32 s{sH}, s{sH}, s{sT0}
    s_mul_i32 s{sT1}, s{sHP}, 5
    s_mul_i32 s{sO1}, s{sT0}, 3
    s_add_u32 s{sO1}, s{sO1}, s{sT1}
    s_add_u32 s{sO2}, s{sT1}, 2
    s_lshl_b32 s{sF1}, s{sO1}, 3
    s_lshl_b32 s{sF2}, s{sO2}, 3
    s_lshl_b32 s{sT1}, s{sT0}, 2
    s_add_u32 s{sF2}, s{sF2}, s{sT1}
    s_lshl_b32 s{sO1}, s{sO1}, 15
    s_lshl_b32 s{sO2}, s{sO2}, 15
    s_lshl_b32 s{sT1}, s{sT0}, 3
    s_add_u32 s{sO2}, s{sO2}, s{sT1}
    v_and_b32 v{T}, 31, v{L}
    v_lshrrev_b32 v{T+1}, 5, v{L}
    v_lshlrev_b32 v{T+2}, 15, v{T+1}
    v_lshl_add_u32 v{T+2}, v{T}, 4, v{T+2}
    v_add_u32 v{AT_VK1}, s{sO1}, v{T+2}
    v_lshlrev_b32 v{T+2}, 4, v{T}
    v_add_u32 v{AT_VK2}, s{sO2}, v{T+2}
    """)
    a.c("V lane address: row rho -> feature")
    a(f"""
    v_bfe_u32 v{T+2}, v{L}, 2, 1
    v_lshlrev_b32 v{T+2}, 3, v{T+2}
    v_bfe_u32 v{T+3}, v{L}, 3, 1
    v_lshl_add_u32 v{T+2}, v{T+3}, 2, v{T+2}
    v_add_u32 v{T+2}, s{sF1}, v{T+2}
    v_mov_b32 v{T+3}, s{sF2}
    v_cmp_gt_u32 vcc, 16, v{T}
    s_nop 1
    v_cndmask_b32 v{T+2}, v{T+3}, v{T+2}, vcc
    v_and_b32 v{T+3}, 3, v{L}
    v_add_u32 v{T+2}, v{T+2}, v{T+3}
    v_lshrrev_b32 v{T+3}, 7, v{T+2}
    v_and_b32 v{T+2}, 127, v{T+2}
    v_cmp_gt_u32 vcc, 20, v{T}
    v_mov_b32 v{AT_VV}, 128
    s_nop 0
    v_cndmask_b32 v{T+2}, v{AT_VV}, v{T+2}, vcc
    s_mov_b32 s{sT0}, {V_C}
    v_mul_lo_u32 v{T+3}, v{T+3}, s{sT0}
    v_lshl_add_u32 v{T+2}, v{T+2}, 4, v{T+3}
    v_mul_u32_u24 v{T+1}, {V_H}, v{T+1}
    v_add3_u32 v{AT_VV}, v{T+2}, v{T+1}, 0
    v_add_u32 v{AT_VV}, {WS_V}, v{AT_VV}
    s_and_b32 s{sBLK}, s{sRB}, 7
    """)


def phase_at(a, sc, pending_vm=0):
    sHP, sRB, sH, sKB, sKN, sVO, sT0, sT1, sO1, sO2, sF1, sF2, sBLK, sKH = range(44, 58)
    sIT = 58
    L = V_LANE
    T = AT_T

    def kv(b):
        base = AT_KV + 14 * (b % 4)
        return dict(K1=base, V0=base + 4, V1=base + 8, K2=base + 12)

    def ldK(b, sreg, i):
        r = kv(b)
        return [f"buffer_load_dwordx4 {vr(r['K1'],4)}, v{AT_VK1}, {sr(S_WS,4)}, s{sreg} offen offset:{512*i}{sc}",
                f"buffer_load_dwordx2 {vr(r['K2'],2)}, v{AT_VK2}, {sr(S_WS,4)}, s{sreg} offen offset:{512*i}{sc}"]

    def ldV(b):
        r = kv(b)
        return [f"buffer_load_dwordx4 {vr(r['V0'],4)}, v{AT_VV}, {sr(S_WS,4)}, s{sVO} offen{sc}",
                f"buffer_load_dwordx4 {vr(r['V1'],4)}, v{AT_VV}, {sr(S_WS,4)}, s{sVO} offen offset:{V_M}{sc}"]

    def blk_to_k(dst):
        return [f"s_lshl_b32 s{sT0}, s{sKH}, 3", f"s_add_u32 s{sT0}, s{sT0}, s{sBLK}",
                f"s_lshl_b32 s{dst}, s{sT0}, 11", f"s_add_u32 s{dst}, s{dst}, {WS_K}"]

    a.c("---- AT: Q loads and first K/V tiles")
    a(f"s_lshl_b32 s{sT1}, s{sRB}, 11")
    for x in blk_to_k(sKB):
        a(x)
    a(f"s_mul_i32 s{sVO}, s{sT0}, {4*V_T}")
    a(f"v_lshlrev_b32 v{T}, 4, v{L}")
    a(f"v_add_u32 v{T}, s{sO2}, v{T}")
    for x in ldK(0, sKB, 0):
        a(x)
    for p in range(2):
        a(f"buffer_load_dwordx2 {vr(AT_Q2+2*p,2)}, v{T}, {sr(S_WS,4)}, s{sT1} offen offset:{1024*p}{sc}")
        for t in range(2):
            a(f"buffer_load_dwordx4 {vr(AT_Q1+4*(2*p+t),4)}, v{AT_VK1}, {sr(S_WS,4)}, s{sT1} offen offset:{512*(2*p+t)}{sc}")
    for x in ldV(0):
        a(x)
    a(f"s_add_u32 s{sVO}, s{sVO}, {V_T}")
    for x in ldK(1, sKB, 1):
        a(x)
    for x in ldV(1):
        a(x)
    a(f"s_add_u32 s{sVO}, s{sVO}, {V_T}")
    for x in ldK(2, sKB, 2):
        a(x)
    for i in range(64):
        a(f"v_mov_b32 v{AT_O+i}, 0")
    for i in range(4):
        a(f"v_mov_b32 v{AT_P+12+i}, 0")
        a(f"v_mov_b32 v{kv(3)['V1']+i}, 0")
    a(f"s_add_u32 s{sBLK}, s{sBLK}, 1")
    a(f"s_and_b32 s{sBLK}, s{sBLK}, 7")
    for x in blk_to_k(sKN):
        a(x)
    a(f"s_mov_b32 s{sIT}, 8")

    def qk2b(buf, b, pair):
        return f"v_mfma_f32_32x32x4_2b_bf16 {vr(buf,32)}, {vr(kv(b)['K2'],2)}, {vr(AT_Q2+2*pair,2)}, 0"

    def qk1(buf, b, pair, t):
        d = buf + 16 * t
        return f"v_mfma_f32_32x32x16_bf16 {vr(d,16)}, {vr(kv(b)['K1'],4)}, {vr(AT_Q1+4*(2*pair+t),4)}, {vr(d,16)}"

    def pv(b, m, qt, pi):
        o = AT_O + 16 * qt
        return f"v_mfma_f32_32x32x16_bf16 {vr(o,16)}, {vr(kv(b)['V%d' % m],4)}, {vr(AT_P+4*pi,4)}, {vr(o,16)}"

    a("s_waitcnt vmcnt(8)")
    a(qk2b(AT_SA, 0, 0))
    a("s_nop 15")
    a("s_nop 1")
    a(qk1(AT_SA, 0, 0, 0))
    a(qk1(AT_SA, 0, 0, 1))
    a("s_nop 11")

    loop = a.label("at_loop")
    a(".p2align 6")
    a(f"{loop}:")
    for st in range(4):
        for pair in range(2):
            X, Y = (AT_SA, AT_SB) if pair == 0 else (AT_SB, AT_SA)
            nb, npair = (st, 1) if pair == 0 else (st + 1, 0)
            pb, pqt = (st - 1, 3) if pair == 0 else (st, 1)
            free = []
            pre = None
            if pair == 0:
                lv = ldV(st + 2)
                if st + 3 < 4:
                    lk = ldK(st + 3, sKB, st + 3)
                else:
                    lk = ldK(st + 3, sKN, st + 3 - 4)
                if st + 2 == 3:
                    adv = f"s_mul_i32 s{sVO}, s{sT0}, {4*V_T}"
                else:
                    adv = f"s_add_u32 s{sVO}, s{sVO}, {V_T}"
                free = [None, "s_waitcnt vmcnt(6)", lv[0], lv[1], adv, lk[0], lk[1]]
            else:
                pre = "s_waitcnt vmcnt(8)"
                free = [None] * 7
                if st == 3:
                    free = [f"s_mov_b32 s{sKB}, s{sKN}", f"s_add_u32 s{sBLK}, s{sBLK}, 1", f"s_and_b32 s{sBLK}, s{sBLK}, 7",
                            f"s_lshl3_add_u32 s{sT0}, s{sKH}, s{sBLK}", f"s_lshl_b32 s{sKN}, s{sT0}, 11",
                            f"s_add_u32 s{sKN}, s{sKN}, {WS_K}", f"s_sub_u32 s{sIT}, s{sIT}, 1"]
            M = [qk2b(Y, nb, npair), pv(pb, 1, pqt, 3), pv(st, 0, 2 * pair, 0), qk1(Y, nb, npair, 0),
                 pv(st, 1, 2 * pair, 1), qk1(Y, nb, npair, 1), pv(st, 0, 2 * pair + 1, 2)]
            pos = {0: 0, 7: 1, 14: 2, 21: 3, 26: 4, 33: 5, 39: 6}
            V = []
            for g in range(4):
                base = X + 8 * g
                V += [f"v_exp_f32 v{base+i}, v{base+i}" for i in range(8)]
                V += [f"v_cvt_pk_bf16_f32 v{AT_P+4*g+i}, v{base+2*i}, v{base+2*i+1}" for i in range(4)]
            if pre:
                a(pre)
            for i, x in enumerate(V):
                if i in pos:
                    k = pos[i]
                    a(M[k])
                    if free[k]:
                        a(free[k])
                a(x)
    a(f"s_cmp_lg_u32 s{sIT}, 0")
    a(f"s_cbranch_scc1 {loop}")
    a("s_nop 0")
    a(pv(3, 1, 3, 3))
    a.c("---- AT: combine the two key halves")
    nosw = a.label("at_nosw")
    a("s_nop 11")
    a(f"s_cmp_eq_u32 s{sKH}, 0")
    a(f"s_cbranch_scc1 {nosw}")
    for t in range(2):
        for i in range(13):
            a(f"v_swap_b32 v{AT_O+16*t+i}, v{AT_O+32+16*t+i}")
    a(f"{nosw}:")
    a(f"""
    s_mul_i32 s{sT0}, s{S_WAVE}, 6144
    s_add_u32 s{sT0}, s{sT0}, {CMB_OFF}
    v_lshl_add_u32 v{T}, v{L}, 4, s{sT0}
    s_xor_b32 s{sT0}, s{S_WAVE}, 2
    s_mul_i32 s{sT0}, s{sT0}, 6144
    s_add_u32 s{sT0}, s{sT0}, {CMB_OFF}
    v_lshl_add_u32 v{T+1}, v{L}, 4, s{sT0}
    v_or_b32 v{T+2}, 32, v{L}
    v_lshl_add_u32 v{T+2}, v{T+2}, 4, s{sT0}
    """)
    for t in range(2):
        for g in range(3):
            a(f"ds_write_b128 v{T}, {vr(AT_O+32+16*t+4*g,4)} offset:{(t*3+g)*1024}")
    a("s_waitcnt vmcnt(0) lgkmcnt(0)")
    a("s_barrier")
    R = AT_O + 32
    for t in range(2):
        for g in range(3):
            a(f"ds_read_b128 {vr(R+16*t+4*g,4)}, v{T+1} offset:{(t*3+g)*1024}")
        a(f"ds_read_b32 v{R+16*t+12}, v{T+2} offset:{(t*3+2)*1024}")


def at_finish(a, sc):
    sHP, sRB, sH, sKB, sKN, sVO, sT0, sT1, sO1, sO2, sF1, sF2, sBLK, sKH = range(44, 58)
    R = AT_O + 32
    a(f"""
    s_lshl_b32 s{sT1}, s{sRB}, 11
    s_lshl_b32 s{sT0}, s{sKH}, 10
    s_add_u32 s{sT1}, s{sT1}, s{sT0}
    s_add_u32 s{sT1}, s{sT1}, {WS_O}
    """)
    for t in range(2):
        o = AT_O + 16 * t
        for i in range(13):
            a(f"v_add_f32 v{o+i}, v{o+i}, v{R+16*t+i}")
        a(f"v_rcp_f32 v{o+13}, v{o+12}")
        a("s_nop 0")
        for i in range(12):
            a(f"v_mul_f32 v{o+i}, v{o+i}, v{o+13}")
        for i in range(6):
            a(f"v_cvt_pk_bf16_f32 v{R+16*t+i}, v{o+2*i}, v{o+2*i+1}")
        a(f"buffer_store_dwordx4 {vr(R+16*t,4)}, v{AT_VK1}, {sr(S_WS,4)}, s{sT1} offen offset:{512*t}{sc}")
        a("s_mov_b32 exec_hi, 0")
        a(f"buffer_store_dwordx2 {vr(R+16*t+4,2)}, v{AT_VK2}, {sr(S_WS,4)}, s{sT1} offen offset:{512*t}{sc}")
        a("s_mov_b64 exec, -1")


OP_WA = 240
OP_ACC = 200
OP_OF = 120
OP_WF = 16


def op_waddr(a):
    L = V_LANE
    T = 244
    a(f"""
    v_lshrrev_b32 v{T}, 4, v{L}
    v_bfe_u32 v{T+1}, v{L}, 2, 2
    v_lshl_add_u32 v{T}, v{T}, 3, v{T+1}
    v_mul_u32_u24 v{T}, 160, v{T}
    v_and_b32 v{T+1}, 3, v{L}
    s_lshr_b32 s{S_T}, s{S_WAVE}, 1
    s_mul_i32 s{S_T}, s{S_T}, 5120
    v_add_u32 v{T}, s{S_T}, v{T}
    v_lshl_add_u32 v{OP_WA}, v{T+1}, 4, v{T}
    v_lshl_add_u32 v{OP_WA+1}, v{T+1}, 3, v{T}
    v_add_u32 v{OP_WA+2}, 40960, v{OP_WA}
    v_add_u32 v{OP_WA+3}, 40960, v{OP_WA+1}
    """)


def op_wreads(j, dst):
    s0, s1 = WO_SLOT_PRE(2 * j), WO_SLOT_PRE(2 * j + 1)
    assert s1 == s0 + 1, (j, s0, s1)
    off = s0 * 5120
    hi = 0
    if off >= 40960:
        off -= 40960
        hi = 2
    out = []
    for ct in range(5):
        for e in range(2):
            if ct < 4:
                areg, o = OP_WA + hi, (ct >> 1) * 64 + (ct & 1) * 8
            else:
                areg, o = OP_WA + 1 + hi, 128
            out.append(f"ds_read_b64_tr_b16 {vr(dst+4*ct+2*e,2)}, v{areg} offset:{off + o + e*640}")
    return out


def WO_SLOT_PRE(k):
    return WO_SLOT[k]


def phase_op(a, sc):
    sTB, sT0, sT1, sTH, sKH = 44, 45, 46, 47, 48
    L = V_LANE
    T = 244
    a.c("---- OP: mapping tb64 = 4*xcd + (idx>>3), cb = idx&7")
    a(f"""
    s_and_b32 s{sT0}, s2, 7
    s_lshl_b32 s{sTB}, s{sT0}, 2
    s_lshr_b32 s{sT0}, s2, 6
    s_add_u32 s{sTB}, s{sTB}, s{sT0}
    s_and_b32 s{sTH}, s{S_WAVE}, 1
    s_lshr_b32 s{sKH}, s{S_WAVE}, 1
    s_lshl_b32 s{sT0}, s{sTB}, 10
    s_lshl_b32 s{sT1}, s{sTH}, 9
    s_add_u32 s{sT0}, s{sT0}, s{sT1}
    s_lshl_b32 s{sT1}, s{sKH}, 17
    s_add_u32 s{sT0}, s{sT0}, s{sT1}
    s_add_u32 s{sT0}, s{sT0}, {WS_O}
    v_and_b32 v{T}, 15, v{L}
    v_lshrrev_b32 v{T+1}, 4, v{L}
    v_lshlrev_b32 v{T+1}, 15, v{T+1}
    v_lshl_add_u32 v{T}, v{T}, 4, v{T+1}
    """)
    for j in range(10):
        for t in range(2):
            a(f"buffer_load_dwordx4 {vr(OP_OF+(2*j+t)*4,4)}, v{T}, {sr(S_WS,4)}, s{sT0} offen offset:{256*t}{sc}")
        if j < 9:
            a(f"s_add_u32 s{sT0}, s{sT0}, {8*32768}")
    a("s_waitcnt vmcnt(20)")
    a("s_barrier")

    def wreg(j):
        return WPRE + 20 * j if j < 2 else OP_WF + 20 * (j % 2)

    for x in op_wreads(2, wreg(2)):
        a(x)
    for j in range(10):
        if 2 <= j + 1 < 10 and j + 1 != 2:
            pass
        nxt = op_wreads(j + 1, wreg(j + 1)) if (j + 1 >= 3 and j + 1 < 10) else []
        if j >= 2:
            a(f"s_waitcnt vmcnt({18-2*j}) lgkmcnt(0)")
        else:
            a(f"s_waitcnt vmcnt({18-2*j})")
        k = 0
        for ct in range(5):
            for t in range(2):
                acc = OP_ACC + (ct * 2 + t) * 4
                c = "0" if j == 0 else vr(acc, 4)
                a(f"v_mfma_f32_16x16x32_bf16 {vr(acc,4)}, {vr(wreg(j)+4*ct,4)}, {vr(OP_OF+(2*j+t)*4,4)}, {c}")
                if k < len(nxt):
                    a(nxt[k]); k += 1
    a.c("reduce the two k halves: wave kh keeps token tile kh, sends the other")
    nosw = a.label("op_nosw")
    a("s_nop 7")
    a(f"s_cmp_eq_u32 s{sKH}, 0")
    a(f"s_cbranch_scc1 {nosw}")
    for ct in range(5):
        for i in range(4):
            a(f"v_swap_b32 v{OP_ACC+ct*8+i}, v{OP_ACC+ct*8+4+i}")
    a(f"{nosw}:")
    a("s_barrier")
    a(f"""
    s_mul_i32 s{sT0}, s{S_WAVE}, 5120
    v_lshl_add_u32 v{T}, v{L}, 4, s{sT0}
    s_xor_b32 s{sT0}, s{S_WAVE}, 2
    s_mul_i32 s{sT0}, s{sT0}, 5120
    v_lshl_add_u32 v{T+1}, v{L}, 4, s{sT0}
    """)
    for ct in range(5):
        a(f"ds_write_b128 v{T}, {vr(OP_ACC+ct*8+4,4)} offset:{ct*1024}")
    a("s_waitcnt lgkmcnt(0)")
    a("s_barrier")
    for ct in range(5):
        a(f"ds_read_b128 {vr(OP_ACC+ct*8+4,4)}, v{T+1} offset:{ct*1024}")
    a(f"""
    s_lshl_b32 s{sT0}, s{sTB}, 6
    s_lshl_b32 s{sT1}, s{sTH}, 5
    s_add_u32 s{sT0}, s{sT0}, s{sT1}
    s_lshl_b32 s{sT1}, s{sKH}, 4
    s_add_u32 s{sT0}, s{sT0}, s{sT1}
    s_mul_i32 s{sT0}, s{sT0}, 2560
    s_lshr_b32 s{sT1}, s2, 3
    s_and_b32 s{sT1}, s{sT1}, 7
    s_mul_i32 s{sT1}, s{sT1}, 160
    s_add_u32 s{sT0}, s{sT0}, s{sT1}
    v_and_b32 v{T}, 15, v{L}
    v_mul_u32_u24 v{T}, 2560, v{T}
    v_lshrrev_b32 v{T+2}, 4, v{L}
    v_lshl_add_u32 v{T+1}, v{T+2}, 3, v{T}
    v_lshl_add_u32 v{T}, v{T+2}, 4, v{T}
    s_waitcnt lgkmcnt(0)
    """)
    D = OP_OF
    for ct in range(5):
        for i in range(4):
            a(f"v_add_f32 v{OP_ACC+ct*8+i}, v{OP_ACC+ct*8+i}, v{OP_ACC+ct*8+4+i}")
        for i in range(2):
            a(f"v_cvt_pk_bf16_f32 v{D+2*ct+i}, v{OP_ACC+ct*8+2*i}, v{OP_ACC+ct*8+2*i+1}")
    a(f"buffer_store_dwordx4 {vr(D,4)}, v{T}, {sr(S_OUT,4)}, s{sT0} offen")
    a(f"buffer_store_dwordx4 {vr(D+4,4)}, v{T}, {sr(S_OUT,4)}, s{sT0} offen offset:64")
    a(f"buffer_store_dwordx2 {vr(D+8,2)}, v{T+1}, {sr(S_OUT,4)}, s{sT0} offen offset:128")


S_U, S_LA, S_AI, S_CR, S_CI, S_LD, S_DS = 8, 12, 64, 68, 72, 76, 80
sG, sCG, sTBQ = 33, 34, 35


def ssm_srds(a):
    for base, off, n in ((S_U, 24, 2621440), (S_LA, 32, 163840), (S_AI, 40, 163840), (S_CR, 48, 163840),
                         (S_CI, 56, 163840), (S_LD, 64, 1280), (S_DS, 72, 1280), (S_OUT, 80, 5242880),
                         (S_DBG, 88, 256), (S_WS, 96, WS_SIZE)):
        a(f"s_load_dwordx2 {sr(base,2)}, s[0:1], {off}")
        srd(a, base, n)
    a(f"""
    s_sub_u32 s{sG}, s2, {N_MAIN}
    s_lshr_b32 s{sCG}, s{sG}, 4
    s_and_b32 s{sTBQ}, s{sG}, 15
    s_mov_b32 s60, 0x05040100
    s_mov_b32 s61, 0x07060302
    """)


def ssm_t1(a, sc):
    L = V_LANE
    T, R, P = 4, 16, 32
    a.c("---- SSM T1")
    a(f"""
    v_lshrrev_b32 v{T}, 3, v{L}
    v_and_b32 v{T+1}, 7, v{L}
    v_mul_u32_u24 v{T+2}, 5120, v{T}
    v_lshl_add_u32 v{T+2}, v{T+1}, 4, v{T+2}
    s_lshl_b32 s{S_T}, s{sTBQ}, 7
    s_lshl_b32 s{S_T+1}, s{S_WAVE}, 5
    s_add_u32 s{S_T}, s{S_T}, s{S_T+1}
    s_mul_i32 s{S_T}, s{S_T}, 1280
    s_lshl_b32 s{S_T+1}, s{sCG}, 7
    s_add_u32 s{S_T}, s{S_T}, s{S_T+1}
    s_waitcnt lgkmcnt(0)
    """)
    for j in range(4):
        a(f"buffer_load_dwordx4 {vr(R+4*j,4)}, v{T+2}, {sr(S_U,4)}, s{S_T} offen offset:{1280*j}")
    a(f"""
    v_lshrrev_b32 v{T+3}, 1, v{T}
    s_lshl_b32 s{S_T+1}, s{S_WAVE}, 2
    v_add_u32 v{T+3}, s{S_T+1}, v{T+3}
    v_xor_b32 v{T+3}, v{T+3}, v{T+1}
    v_lshlrev_b32 v{T+3}, 4, v{T+3}
    v_lshl_add_u32 v{T+3}, v{T+1}, 11, v{T+3}
    v_and_b32 v{T+4}, 1, v{T}
    v_lshl_add_u32 v{T+3}, v{T+4}, 3, v{T+3}
    s_waitcnt vmcnt(0)
    """)
    for d in range(4):
        for p in range(2):
            e = 2 * d + p
            a(f"v_perm_b32 v{P+2*e}, v{R+4+d}, v{R+d}, s{60+p}")
            a(f"v_perm_b32 v{P+2*e+1}, v{R+12+d}, v{R+8+d}, s{60+p}")
            a(f"ds_write_b64 v{T+3}, {vr(P+2*e,2)} offset:{256*e}")
    a(f"""
    s_lshl_b32 s{S_T+1}, s{S_WAVE}, 12
    v_lshl_add_u32 v{T}, v{L}, 4, s{S_T+1}
    s_waitcnt lgkmcnt(0)
    s_barrier
    """)
    for i in range(4):
        a(f"ds_read_b128 {vr(R+4*i,4)}, v{T} offset:{1024*i}")
    a(f"""
    s_lshl_b32 s{S_T}, s{sG}, 14
    s_add_u32 s{S_T}, s{S_T}, s{S_T+1}
    s_add_u32 s{S_T}, s{S_T}, {WS_UT}
    s_lshl_b32 s{S_T+1}, s{S_WAVE}, 1
    v_xor_b32 v{T+1}, s{S_T+1}, v{L}
    v_lshlrev_b32 v{T+1}, 4, v{T+1}
    v_xor_b32 v{T+2}, 16, v{T+1}
    """)
    for i in range(4):
        a(f"s_waitcnt lgkmcnt({3-i})")
        a(f"buffer_store_dwordx4 {vr(R+4*i,4)}, v{T+1+(i>>1)}, {sr(S_WS,4)}, s{S_T} offen offset:{1024*i}{sc}")


def ssm_t2(a, sc):
    L = V_LANE
    T, R, P = 4, 16, 32
    a.c("---- SSM T2")
    a(f"""
    v_lshrrev_b32 v{T}, 4, v{L}
    v_and_b32 v{T+1}, 15, v{L}
    v_lshlrev_b32 v{T+2}, 10, v{T}
    v_lshl_add_u32 v{T+2}, v{T+1}, 4, v{T+2}
    s_lshl_b32 s{S_T}, s{sG}, 14
    s_lshl_b32 s{S_T+1}, s{S_WAVE}, 12
    s_add_u32 s{S_T}, s{S_T}, s{S_T+1}
    s_add_u32 s{S_T}, s{S_T}, {WS_YT}
    """)
    for j in range(4):
        a(f"buffer_load_dwordx4 {vr(R+4*j,4)}, v{T+2}, {sr(S_WS,4)}, s{S_T} offen offset:{256*j}{sc}")
    a(f"""
    v_lshrrev_b32 v{T+3}, 1, v{T}
    s_lshl_b32 s{S_T+1}, s{S_WAVE}, 1
    v_add_u32 v{T+3}, s{S_T+1}, v{T+3}
    v_xor_b32 v{T+3}, v{T+3}, v{T+1}
    v_and_b32 v{T+3}, 7, v{T+3}
    v_lshlrev_b32 v{T+3}, 4, v{T+3}
    v_lshl_add_u32 v{T+3}, v{T+1}, 10, v{T+3}
    v_and_b32 v{T+4}, 1, v{T}
    v_lshl_add_u32 v{T+3}, v{T+4}, 3, v{T+3}
    s_waitcnt vmcnt(0)
    """)
    for d in range(4):
        for p in range(2):
            e = 2 * d + p
            a(f"v_perm_b32 v{P+2*e}, v{R+4+d}, v{R+d}, s{60+p}")
            a(f"v_perm_b32 v{P+2*e+1}, v{R+12+d}, v{R+8+d}, s{60+p}")
            a(f"ds_write_b64 v{T+3}, {vr(P+2*e,2)} offset:{128*e}")
    a(f"""
    s_lshl_b32 s{S_T+1}, s{S_WAVE}, 12
    v_lshl_add_u32 v{T}, v{L}, 4, s{S_T+1}
    s_waitcnt lgkmcnt(0)
    s_barrier
    """)
    for i in range(4):
        a(f"ds_read_b128 {vr(R+4*i,4)}, v{T} offset:{1024*i}")
    a(f"""
    s_lshl_b32 s{S_T}, s{sTBQ}, 7
    s_lshl_b32 s{S_T+1}, s{S_WAVE}, 5
    s_add_u32 s{S_T}, s{S_T}, s{S_T+1}
    s_mul_i32 s{S_T}, s{S_T}, 2560
    s_lshl_b32 s{S_T+1}, s{sCG}, 7
    s_add_u32 s{S_T}, s{S_T}, s{S_T+1}
    s_add_u32 s{S_T}, s{S_T}, 1280
    v_lshrrev_b32 v{T+1}, 3, v{L}
    v_mul_u32_u24 v{T+1}, 2560, v{T+1}
    s_lshl_b32 s{S_T+1}, s{S_WAVE}, 2
    s_and_b32 s{S_T+1}, s{S_T+1}, 7
    v_xor_b32 v{T+2}, s{S_T+1}, v{L}
    v_and_b32 v{T+2}, 7, v{T+2}
    """)
    for i in range(4):
        a(f"v_xor_b32 v{T+3}, {i}, v{T+2}")
        a(f"v_lshl_add_u32 v{T+4+i}, v{T+3}, 4, v{T+1}")
    for i in range(4):
        a(f"s_waitcnt lgkmcnt({3-i})")
        a(f"buffer_store_dwordx4 {vr(R+4*i,4)}, v{T+4+i}, {sr(S_OUT,4)}, s{S_T} offen")
        if i < 3:
            a(f"s_add_u32 s{S_T}, s{S_T}, {8*2560}")


SSM_WL = 20480
KA_OFF, KB_OFF, U_OFF = 0, 4160, 8320
KG_PRM = 100


def ssm_param_loads(a):
    L = V_LANE
    a(f"""
    s_lshl_b32 s{S_T+4}, s{sG}, 2
    s_add_u32 s{S_T+4}, s{S_T+4}, s{S_WAVE}
    s_lshl_b32 s{S_T+5}, s{S_T+4}, 8
    s_lshl_b32 s{S_T+4}, s{S_T+4}, 1
    v_lshlrev_b32 v2, 2, v{L}
    v_mov_b32 v3, 0
    s_waitcnt lgkmcnt(0)
    buffer_load_dword v{KG_PRM}, v2, {sr(S_LA,4)}, s{S_T+5} offen
    buffer_load_dword v{KG_PRM+1}, v2, {sr(S_AI,4)}, s{S_T+5} offen
    buffer_load_dword v{KG_PRM+2}, v2, {sr(S_CR,4)}, s{S_T+5} offen
    buffer_load_dword v{KG_PRM+3}, v2, {sr(S_CI,4)}, s{S_T+5} offen
    buffer_load_ushort v{KG_PRM+4}, v3, {sr(S_LD,4)}, s{S_T+4} offen
    buffer_load_ushort v{KG_PRM+5}, v3, {sr(S_DS,4)}, s{S_T+4} offen
    """)


def ssm_kgen(a):
    L = V_LANE
    sLB, sPASS = 40, 41
    LOG2E = f2u(math.log2(math.e))
    INV2PI = f2u(1.0 / (2 * math.pi))
    vDT, vWA, vRA, vARL, vAIR = 4, 5, 6, 7, 8
    T = 10
    C = 16
    Z1, Z2, Z4, Z8, Z32, Z256 = 18, 20, 22, 24, 26, 28
    TMP = 30
    CH = 40
    PK = 60
    ACC = 112
    FA, FB = 68, 84
    a.c("---- SSM K generation")
    a(f"""
    s_mul_i32 s{sLB}, s{S_WAVE}, {SSM_WL}
    v_lshl_add_u32 v{vWA}, v{L}, 2, s{sLB}
    v_and_b32 v{T}, 31, v{L}
    v_mul_u32_u24 v{T}, 272, v{T}
    v_lshrrev_b32 v{T+1}, 5, v{L}
    v_lshl_add_u32 v{T}, v{T+1}, 4, v{T}
    v_add_u32 v{vRA}, s{sLB}, v{T}
    v_lshlrev_b32 v{vDT}, 16, v{KG_PRM+4}
    v_mul_f32 v{vDT}, {LOG2E:#x}, v{vDT}
    v_exp_f32 v{vDT}, v{vDT}
    s_nop 0
    v_cvt_pk_bf16_f32 v{vDT}, v{vDT}, v{vDT}
    v_and_b32 v{vDT}, 0xffff0000, v{vDT}
    s_mov_b32 s{sPASS}, 0
    """)
    for i in range(16):
        a(f"v_mov_b32 v{ACC+i}, 0")
    loop = a.label("kg_pass")
    a(f"{loop}:")
    a(f"""
    v_lshlrev_b32 v{T}, 16, v{KG_PRM}
    v_mul_f32 v{T}, {LOG2E:#x}, v{T}
    v_exp_f32 v{T}, v{T}
    v_lshlrev_b32 v{T+1}, 16, v{KG_PRM+1}
    v_cvt_pk_bf16_f32 v{T}, v{T}, v{T}
    v_and_b32 v{T}, 0xffff0000, v{T}
    v_mul_f32 v{T}, v{T}, v{vDT}
    v_mul_f32 v{vARL}, {f2u(-math.log2(math.e)):#x}, v{T}
    v_mul_f32 v{T+1}, v{T+1}, v{vDT}
    v_mul_f32 v{vAIR}, {INV2PI:#x}, v{T+1}
    v_lshlrev_b32 v{C}, 16, v{KG_PRM+2}
    v_lshlrev_b32 v{C+1}, 16, v{KG_PRM+3}
    v_add_f32 v{T}, v{vDT}, v{vDT}
    v_mul_f32 v{C}, v{C}, v{T}
    v_mul_f32 v{C+1}, v{C+1}, v{T}
    """)
    for z, p in ((Z1, 1.0), (Z8, 8.0), (Z256, 256.0)):
        a(f"""
        v_mul_f32 v{T}, {f2u(p):#x}, v{vARL}
        v_mul_f32 v{T+1}, {f2u(p):#x}, v{vAIR}
        v_exp_f32 v{T}, v{T}
        v_fract_f32 v{T+1}, v{T+1}
        v_cos_f32 v{z}, v{T+1}
        v_sin_f32 v{z+1}, v{T+1}
        s_nop 0
        v_mul_f32 v{z}, v{z}, v{T}
        v_mul_f32 v{z+1}, v{z+1}, v{T}
        """)

    pki = [0, 0, 0, 0]

    def cmul(d, w, z, q):
        t = TMP + 2 * q
        return [f"v_pk_mul_f32 {vr(t,2)}, {vr(w,2)}, {vr(z,2)} op_sel:[0,0] op_sel_hi:[1,0]",
                f"v_pk_fma_f32 {vr(d,2)}, {vr(w,2)}, {vr(z,2)}, {vr(t,2)} op_sel:[1,1,0] op_sel_hi:[0,1,1] neg_lo:[1,0,0]"]

    def put(src, rows, neg, q):
        p = PK + 2 * q + pki[q] % 2
        pki[q] += 1
        out = [f"v_cvt_pk_bf16_f32 v{p}, v{src}, {'-' if neg else ''}v{src+1}"]
        for r in rows:
            out.append(f"ds_write_b32 v{vWA}, v{p} offset:{272*r}")
        return out

    def xrow(h, r):
        return 8 * (r // 4) + 4 * h + (r % 4)

    def emit_parallel(seqs):
        n = max(len(s) for s in seqs)
        for i in range(n):
            grp = [s[i] for s in seqs if i < len(s)]
            m = max(len(g) for g in grp)
            for k in range(m):
                for g in grp:
                    if k < len(g):
                        a(g[k])

    Y0, Y1, Y2, Y3 = CH, CH + 2, CH + 4, CH + 6
    XA_, XB_, XC_, XD_ = CH + 8, CH + 10, CH + 12, CH + 14
    a(f"v_mov_b32 v{Y0}, 1.0")
    a(f"v_mov_b32 v{Y0+1}, 0")
    a(f"v_mov_b32 v{Y1}, v{Z8}")
    a(f"v_mov_b32 v{Y1+1}, v{Z8+1}")
    emit_parallel([[cmul(Z2, Z1, Z1, 0), cmul(Z4, Z2, Z2, 0)], [cmul(Y2, Z8, Z8, 1), cmul(Y3, Y2, Z8, 1)], [put(C, [xrow(0, 0)], True, 2), cmul(Z32, Y2, Y2, 2)]])
    ych = []
    for c, Y in enumerate((Y0, Y1, Y2, Y3)):
        s = []
        for k in range(8):
            s.append(put(Y, [32 + c + 4 * k], False, c))
            if k < 7:
                s.append(cmul(Y, Y, Z32, c))
        ych.append(s)
    emit_parallel(ych)
    s0 = []
    for k in range(1, 9):
        s0.append(cmul(XA_, C if k == 1 else XA_, Z1, 0))
        s0.append(put(XA_, [xrow(0, k)], True, 0))
    s1 = []
    s1.append(cmul(XB_, C, Z256, 1)); s1.append(put(XB_, [xrow(1, 0), xrow(1, 1)], True, 1))
    b1rows = {2: [2], 4: [3, 4, 5], 6: [6], 8: [7, 8]}
    s2 = [[], []]
    for k, off in enumerate((2, 4, 6, 8)):
        s2.append(cmul(XC_, XB_ if k == 0 else XC_, Z2, 2))
        s2.append(put(XC_, [xrow(1, r) for r in b1rows[off]], True, 2))
    XE_ = CH + 16
    cur, oth = XB_, XE_
    for b in range(2, 8):
        h = b & 1
        s1.append(cmul(oth, cur, Z256, 1)); cur, oth = oth, cur
        if b < 4:
            s1.append(put(cur, [xrow(h, 9)], True, 1))
            s1.append(cmul(XD_, cur, Z4, 1)); s1.append(put(XD_, [xrow(h, 10)], True, 1))
            s1.append(cmul(XD_, cur, Z8, 1)); s1.append(put(XD_, [xrow(h, 11)], True, 1))
        else:
            r0 = 12 if b < 6 else 14
            s1.append(put(cur, [xrow(h, r0)], True, 1))
            s1.append(cmul(XD_, cur, Z8, 1)); s1.append(put(XD_, [xrow(h, r0 + 1)], True, 1))
    emit_parallel([s0, s1, s2])
    a("s_waitcnt lgkmcnt(0)")
    for half in range(2):
        for k in range(4):
            ks = half * 4 + k
            a(f"ds_read_b128 {vr(FA+4*k,4)}, v{vRA} offset:{32*ks}")
            a(f"ds_read_b128 {vr(FB+4*k,4)}, v{vRA} offset:{32*ks + 32*272}")
        for k in range(4):
            a(f"s_waitcnt lgkmcnt({6-2*k})")
            a(f"v_mfma_f32_32x32x16_bf16 {vr(ACC,16)}, {vr(FA+4*k,4)}, {vr(FB+4*k,4)}, {vr(ACC,16)}")
    for i in range(4):
        a(f"v_lshrrev_b32 v{KG_PRM+i}, 16, v{KG_PRM+i}")
    a(f"""
    s_add_u32 s{sPASS}, s{sPASS}, 1
    s_cmp_lt_u32 s{sPASS}, 2
    s_cbranch_scc1 {loop}
    """)
    a.c("expand to the two reversed K copies")
    a(f"""
    v_and_b32 v{T}, 31, v{L}
    v_lshrrev_b32 v{T+1}, 5, v{L}
    v_lshlrev_b32 v{T+2}, 4, v{T}
    v_lshl_add_u32 v{T+2}, v{T+1}, 9, v{T+2}
    v_sub_u32 v{T+2}, {4080-3072}, v{T+2}
    v_add_u32 v{vWA}, s{sLB}, v{T+2}
    v_and_b32 v{T}, 1, v{L}
    v_cmp_eq_u32 vcc, 1, v{T}
    v_lshlrev_b32 v{T+1}, 16, v{KG_PRM+5}
    v_cmp_eq_u32 s[42:43], 0, v{L}
    s_nop 4
    v_cndmask_b32 v{T+1}, 0, v{T+1}, s[42:43]
    v_add_f32 v{ACC}, v{ACC}, v{T+1}
    v_cndmask_b32 v{T+2}, v{ACC+12}, v{ACC+13}, vcc
    v_cndmask_b32 v{T+3}, v{ACC+14}, v{ACC+15}, vcc
    """)
    pats = [[ACC + e for e in range(9)],
            [ACC + 9] * 3 + [ACC + 10] * 3 + [ACC + 11] * 3,
            [ACC + 12] * 4 + [T + 2] + [ACC + 13] * 4,
            [ACC + 14] * 4 + [T + 3] + [ACC + 15] * 4]
    for q, k in enumerate(pats):
        for cp in range(2):
            d = FA + (q * 2 + cp) * 4
            for i in range(4):
                hi = 7 - 2 * i + cp
                a(f"v_cvt_pk_bf16_f32 v{d+i}, v{k[hi]}, v{k[hi-1]}")
            a(f"ds_write_b128 v{vWA}, {vr(d,4)} offset:{(KB_OFF if cp else KA_OFF) + 3072 - 1024*q}")
    a.c("tails (negative lags) and zero pad in front of u")
    a(f"""
    v_mov_b32 v{T}, 0
    v_cvt_pk_bf16_f32 v{T+1}, v{ACC}, v{T}
    v_cndmask_b32 v{T+1}, 0, v{T+1}, s[42:43]
    v_lshl_add_u32 v{T+2}, v{L}, 2, s{sLB}
    ds_write_b32 v{T+2}, v{T} offset:{U_OFF}
    s_mov_b32 exec_hi, 0x00ffffff
    ds_write_b32 v{T+2}, v{T} offset:{U_OFF+256}
    s_mov_b64 exec, 0xff
    ds_write_b32 v{T+2}, v{T} offset:{KA_OFF+4096}
    ds_write_b32 v{T+2}, v{T+1} offset:{KB_OFF+4096}
    s_mov_b64 exec, -1
    """)


def ssm_conv(a, sc):
    L = V_LANE
    sLB, sC = 40, 41
    T = 4
    UB, KBs = 8, 10
    ACC = 16
    BF = 48
    AF = 80
    a.c("---- SSM conv: load u")
    a(f"""
    v_lshrrev_b32 v{T}, 4, v{L}
    v_lshlrev_b32 v{T}, 14, v{T}
    v_and_b32 v{T+1}, 15, v{L}
    v_lshl_add_u32 v{T}, v{T+1}, 4, v{T}
    s_lshl_b32 s{S_T}, s{sCG}, 18
    s_lshl_b32 s{S_T+1}, s{sTBQ}, 2
    s_add_u32 s{S_T+1}, s{S_T+1}, s{S_WAVE}
    s_lshl_b32 s{S_T+1}, s{S_T+1}, 8
    s_add_u32 s{S_T+2}, s{S_T}, s{S_T+1}
    s_add_u32 s{S_T}, s{S_T+2}, {WS_UT}
    """)
    for i in range(4):
        a(f"buffer_load_dwordx4 {vr(BF+4*i,4)}, v{T}, {sr(S_WS,4)}, s{S_T} offen{sc}")
        if i < 3:
            a(f"s_add_u32 s{S_T}, s{S_T}, 65536")
    a(f"v_lshl_add_u32 v{T+2}, v{L}, 4, s{sLB}")
    a(f"""
    v_lshrrev_b32 v{T+3}, 4, v{L}
    v_lshlrev_b32 v{UB}, 5, v{T+1}
    v_lshl_add_u32 v{UB}, v{T+3}, 4, v{UB}
    v_add_u32 v{UB}, s{sLB}, v{UB}
    v_add_u32 v{UB}, {U_OFF+480-32}, v{UB}
    v_lshlrev_b32 v{T+3}, 4, v{T+3}
    v_lshlrev_b32 v{T+5}, 1, v{T+1}
    v_sub_u32 v{T+3}, v{T+3}, v{T+5}
    v_add_u32 v{T+3}, s{sLB}, v{T+3}
    v_and_b32 v{T+5}, 1, v{L}
    v_cmp_eq_u32 vcc, 1, v{T+5}
    v_mov_b32 v{T+5}, {KB_OFF+4064-512}
    v_mov_b32 v{KBs}, {KA_OFF+4062-512}
    v_cndmask_b32 v{T+5}, v{T+5}, v{KBs}, vcc
    v_add_u32 v{KBs}, v{T+3}, v{T+5}
    v_subrev_u32 v{KBs+1}, 1024, v{KBs}
    v_subrev_u32 v{KBs+2}, 2048, v{KBs}
    v_subrev_u32 v{KBs+3}, 3072, v{KBs}
    """)
    for i in range(32):
        a(f"v_mov_b32 v{ACC+i}, 0")
    for i in range(4):
        a(f"s_waitcnt vmcnt({3-i})")
        a(f"ds_write_b128 v{T+2}, {vr(BF+4*i,4)} offset:{U_OFF+480+1024*i}")
    a(f"s_mov_b32 s{sC}, 8")
    a("s_waitcnt lgkmcnt(0)")
    loop = a.label("cv_loop")
    a(f"{loop}:")

    def rdA(m):
        base = KBs + m // 2
        o = 128 if m % 2 == 0 else 0
        return [f"ds_read2_b32 {vr(AF+4*m,2)}, v{base} offset0:{o} offset1:{o+1}",
                f"ds_read2_b32 {vr(AF+4*m+2,2)}, v{base} offset0:{o+2} offset1:{o+3}"]

    def rdB(i):
        return [f"ds_read_b128 {vr(BF+4*i,4)}, v{UB} offset:{512*i}"]

    for n in range(4):
        for x in rdA(n) + rdB(n):
            a(x)
    for n in range(8):
        outstanding = 3 * (min(n + 3, 7) - n)
        a(f"s_waitcnt lgkmcnt({outstanding})")
        pairs = [(n, i) for i in range(n + 1) if n + i <= 7] + [(m, n) for m in range(n) if m + n <= 7]
        nxt = (rdA(n + 4) + rdB(n + 4)) if n + 4 < 8 else []
        for k, (m, i) in enumerate(pairs):
            acc = ACC + 4 * (m + i)
            a(f"v_mfma_f32_16x16x32_bf16 {vr(acc,4)}, {vr(AF+4*m,4)}, {vr(BF+4*i,4)}, {vr(acc,4)}")
            if k == 0:
                for x in nxt:
                    a(x)
    a(f"""
    v_subrev_u32 v{UB}, 64, v{UB}
    v_subrev_u32 v{KBs}, 64, v{KBs}
    v_subrev_u32 v{KBs+1}, 64, v{KBs+1}
    v_subrev_u32 v{KBs+2}, 64, v{KBs+2}
    v_subrev_u32 v{KBs+3}, 64, v{KBs+3}
    s_sub_u32 s{sC}, s{sC}, 1
    s_cmp_lg_u32 s{sC}, 0
    s_cbranch_scc1 {loop}
    """)
    a.c("store yT")
    a(f"""
    v_bfe_u32 v{T}, v{L}, 3, 1
    v_lshlrev_b32 v{T}, 14, v{T}
    v_and_b32 v{T+1}, 7, v{L}
    v_lshl_add_u32 v{T}, v{T+1}, 5, v{T}
    v_lshrrev_b32 v{T+1}, 4, v{L}
    v_lshl_add_u32 v{T}, v{T+1}, 3, v{T}
    s_add_u32 s{S_T}, s{S_T+2}, {WS_YT}
    s_nop 1
    """)
    for i in range(8):
        a(f"v_cvt_pk_bf16_f32 v{BF+2*i}, v{ACC+4*i}, v{ACC+4*i+1}")
        a(f"v_cvt_pk_bf16_f32 v{BF+2*i+1}, v{ACC+4*i+2}, v{ACC+4*i+3}")
        a(f"buffer_store_dwordx2 {vr(BF+2*i,2)}, v{T}, {sr(S_WS,4)}, s{S_T} offen{sc}")
        if i < 7:
            a(f"s_add_u32 s{S_T}, s{S_T}, 32768")


def kd(name):
    return f""".p2align 6
.amdhsa_kernel {name}
  .amdhsa_next_free_vgpr 256
  .amdhsa_next_free_sgpr 96
  .amdhsa_accum_offset 256
  .amdhsa_group_segment_fixed_size 0
  .amdhsa_kernarg_size 104
  .amdhsa_user_sgpr_count 2
  .amdhsa_user_sgpr_kernarg_segment_ptr 1
  .amdhsa_system_sgpr_workgroup_id_x 1
.end_amdhsa_kernel
"""


def khead(a, name):
    a(f".globl {name}")
    a(".p2align 8")
    a(f".type {name},@function")
    a(f"{name}:")


def role_split(a):
    ssm, end = a.label("ssm"), a.label("end")
    a(f"s_cmp_ge_u32 s2, {N_MAIN+N_SSM}")
    a(f"s_cbranch_scc1 {end}")
    entry_common(a)
    a(f"s_cmp_ge_u32 s2, {N_MAIN}")
    a(f"s_cbranch_scc1 {ssm}")
    return ssm, end


def build_list():
    a = A()
    hdr = open(f"cdna_kernels/{NAME}.s.ref").read().split("; Override launch")[0]
    ks = ["p1_kernel", "p2_kernel", "p3_kernel"]
    for k in ks:
        hdr += f"; @launch kernel={k} grid=({N_MAIN+N_SSM},1,1) block=(256,1,1) lds={LDS_BYTES}\n"
    a('.amdgcn_target "amdgcn-amd-amdhsa--gfx950"')
    a(".text")
    sc = ""
    khead(a, ks[0])
    ssm, end = role_split(a)
    main_srds(a)
    phase_g1(a, sc)
    a("s_endpgm")
    a(f"{ssm}:")
    ssm_srds(a)
    ssm_t1(a, sc)
    a(f"{end}:")
    a("s_endpgm")
    khead(a, ks[1])
    ssm, end = role_split(a)
    main_srds(a)
    at_setup(a)
    a("s_waitcnt lgkmcnt(0)")
    phase_at(a, sc)
    a("s_waitcnt lgkmcnt(0)")
    at_finish(a, sc)
    a("s_endpgm")
    a(f"{ssm}:")
    ssm_srds(a)
    ssm_param_loads(a)
    a("s_waitcnt vmcnt(0)")
    ssm_kgen(a)
    ssm_conv(a, sc)
    a(f"{end}:")
    a("s_endpgm")
    khead(a, ks[2])
    ssm, end = role_split(a)
    main_srds(a)
    wo_addr_setup(a)
    op_waddr(a)
    a("s_waitcnt lgkmcnt(0)")
    wo_issue(a, WO_EARLY)
    a("s_waitcnt vmcnt(0)")
    a("s_barrier")
    for j in range(2):
        for x in op_wreads(j, WPRE + 20 * j):
            a(x)
    a("s_waitcnt lgkmcnt(0)")
    a("s_barrier")
    wo_issue(a, WO_LATE)
    phase_op(a, sc)
    a("s_endpgm")
    a(f"{ssm}:")
    ssm_srds(a)
    a("s_waitcnt lgkmcnt(0)")
    ssm_t2(a, sc)
    a(f"{end}:")
    a("s_endpgm")
    a('.section .rodata,"a"')
    out = hdr + a.text()
    for k in ks:
        out += kd(k)
    return out


if __name__ == "__main__":
    mode = sys.argv[1] if len(sys.argv) > 1 else "list"
    path = sys.argv[2] if len(sys.argv) > 2 else f"cdna_kernels/{NAME}.s"
    txt = build_list()
    open(path, "w").write(txt)
    print("wrote", path, len(txt), "bytes")
```

```python
import sys, math, struct, os, re
EXP = os.environ.get('EXP', '').split(',')

NAME = "concat_heads__mha_block__ssm_conv_s4d__prompt"

WS_Q = 0x000000
WS_K = 0x280000
WS_V = 0x500000
V_M, V_H, V_T, V_C = 2176, 4352, 8704, 557056
WS_O = 0x7C0000
WS_UT = 0xA40000
WS_YT = 0xCC0000
WS_FLAG = 0xF40000
WS_STAMP = 0xF80000
WS_SIZE = 0x1000000
F_SP = 128
F_G1, F_O, F_U, F_Y = WS_FLAG, WS_FLAG + 256 * 128, WS_FLAG + 272 * 128, WS_FLAG + 282 * 128
F_H = WS_FLAG + 320 * 128
DBG_CLR = 128

LDS_BYTES = 81920
N_MAIN, N_SSM = 256, 160
SC = " sc1"
MAINFIRST = 'mainfirst' in EXP
HINT_STAGE = int(os.environ.get('HINT_STAGE', '8'))
HINT_POS = int(os.environ.get('HINT_POS', '1'))
PRIO_STAGE = int(os.environ.get('PRIO_STAGE', '0'))


def f2u(x):
    return struct.unpack("<I", struct.pack("<f", x))[0]


class A:
    def __init__(self):
        self.L = []
        self.uid = 0

    def __call__(self, s):
        for line in s.strip("\n").split("\n"):
            line = line.strip()
            if not line:
                continue
            if line.endswith(":") or line.startswith("."):
                self.L.append(line)
            else:
                self.L.append("    " + line)

    def c(self, s):
        self.L.append("    ; " + s)

    def label(self, p="L"):
        self.uid += 1
        return f"{p}_{self.uid}"

    def text(self):
        return "\n".join(self.L) + "\n"


def vr(b, n=1):
    return f"v{b}" if n == 1 else f"v[{b}:{b+n-1}]"


def sr(b, n=1):
    return f"s{b}" if n == 1 else f"s[{b}:{b+n-1}]"


S_X, S_W, S_WS, S_WO, S_OUT, S_DBG = 8, 12, 16, 20, 24, 28
S_WAVE = 32
L = 1

STAMPS = False
CYC = False
_stamp_n = [0]
SLOTS = [84 + 2 * i for i in range(9)] + [64 + 2 * i for i in range(7)]


def stamp(a, wait=True, cyc=False):
    if not STAMPS:
        return
    i = _stamp_n[0]
    assert i < 16
    _stamp_n[0] += 1
    a(f"{'s_memtime' if (CYC or cyc) else 's_memrealtime'} s[{SLOTS[i]}:{SLOTS[i]+1}]")
    if wait:
        a("s_waitcnt lgkmcnt(0)")


def stamp_flush(a):
    if not STAMPS:
        return
    a("s_waitcnt vmcnt(0)")
    stamp(a)
    n = _stamp_n[0]
    a("s_mov_b64 exec, 1")
    a(f"s_lshl_b32 s36, s2, 2")
    a(f"s_add_u32 s36, s36, s{S_WAVE}")
    a(f"s_lshl_b32 s36, s36, 6")
    a(f"s_add_u32 s36, s36, {WS_STAMP}")
    a("v_mov_b32 v2, 0")
    for i in range(16):
        a(f"v_mov_b32 v{8+i}, {'s%d' % SLOTS[i] if i < n else '0'}")
    for i in range(4):
        a(f"buffer_store_dwordx4 v[{8+4*i}:{11+4*i}], v2, {sr(S_WS,4)}, s36 offen offset:{16*i}")


def stamp_reset(n=0):
    _stamp_n[0] = n


def srd(a, base, nbytes):
    a(f"s_mov_b32 s{base+2}, {nbytes}")
    a(f"s_mov_b32 s{base+3}, 0x20000")


def spin(a, loads, test, sleep=2):
    top, ok = a.label("spin_top"), a.label("spin_ok")
    a("s_mov_b32 s58, 0x40000")
    a(f"{top}:")
    a(loads)
    a("s_waitcnt lgkmcnt(0)")
    a(test)
    a(f"s_cbranch_scc1 {ok}")
    a("s_sub_u32 s58, s58, 1")
    a(f"s_cbranch_scc1 {ok}")
    if sleep:
        a(f"s_sleep {sleep}")
    a(f"s_branch {top}")
    a(f"{ok}:")


def wait_cleared(a, vt):
    top, ok = a.label("clr_top"), a.label("clr_ok")
    a("s_mov_b32 s58, 0x40000")
    a(f"{top}:")
    a(f"v_cmp_eq_u32 vcc, 0, v{vt}")
    a(f"s_cbranch_vccz {ok}")
    a("s_sub_u32 s58, s58, 1")
    a(f"s_cbranch_scc1 {ok}")
    a("s_sleep 8")
    a(f"buffer_load_dword v{vt}, v{vt+1}, {sr(S_DBG,4)}, 0 offen sc1")
    a("s_waitcnt vmcnt(0)")
    a(f"s_branch {top}")
    a(f"{ok}:")


def poll_flags(a, vaddr, vt, sleep=1):
    top, ok = a.label("poll_top"), a.label("poll_ok")
    a("s_mov_b32 s58, 0x40000")
    a(f"{top}:")
    a(f"buffer_load_dword v{vt}, v{vaddr}, {sr(S_WS,4)}, 0 offen sc1")
    a("s_waitcnt vmcnt(0)")
    a(f"v_cmp_ne_u32 vcc, 1, v{vt}")
    a(f"s_cbranch_vccz {ok}")
    a("s_mov_b64 exec, vcc")
    a("s_sub_u32 s58, s58, 1")
    a(f"s_cbranch_scc1 {ok}")
    a(f"s_sleep {sleep}")
    a(f"s_branch {top}")
    a(f"{ok}:")
    a("s_mov_b64 exec, -1")


def set_flag(a, soff, vt, srd_=None):
    a(f"v_mov_b32 v{vt}, 1")
    a(f"v_mov_b32 v{vt+1}, 0")
    a("s_mov_b64 exec, 1")
    a(f"buffer_store_byte v{vt}, v{vt+1}, {sr(srd_ or S_WS,4)}, s{soff} offen sc1")
    a("s_mov_b64 exec, -1")


def all16(b):
    return f"""s_and_b64 s[{b}:{b+1}], s[{b}:{b+1}], s[{b+2}:{b+3}]
    s_and_b32 s{b}, s{b}, s{b+1}
    s_cmp_eq_u32 s{b}, 0x01010101"""


WO_V = 241
OP_WA = 246
AT_VK1, AT_VK2, AT_VV, AT_VQ2 = 250, 251, 252, 253
V_PG1 = 254
sHP, sRB_A, sKB, sKN, sVO, sT0A, sT1A, sO1, sO2, sF1, sF2, sBLK, sKH, sIT, sKN2 = 44, 45, 47, 48, 49, 50, 51, 52, 53, 54, 55, 56, 57, 46, 59
S_FG1, S_FO = 62, 63

WO_R_A = [(0, 0), (1, 1), (2, 2)]
WO_R_B = [(3, 3), (4, 4), (5, 5), (6, 6)]
WO_R_C = [(7, 7), (8, 8)]
WO_R_D = [(9, 9), (10, 10)]
WO_LATE = [(11 + i, s) for i, s in enumerate([11, 12, 13, 14, 15, 0, 1, 2, 3])]
WO_SLOT = dict(WO_R_A + WO_R_B + WO_R_C + WO_R_D + WO_LATE)
CMB_OFF = 11 * 5120


def wo_round(grp):
    grp = list(grp)
    while len(grp) < 4:
        grp.append(grp[-1])
    ck = sum(k << (8 * w) for w, (k, _) in enumerate(grp))
    cs = sum(s << (8 * w) for w, (_, s) in enumerate(grp))
    out = [f"""s_lshl_b32 s3, s{S_WAVE}, 3
    s_lshr_b32 s4, {ck:#x}, s3
    s_and_b32 s4, s4, 0xff
    s_mul_i32 s4, s4, 40960
    s_lshr_b32 s5, {cs:#x}, s3
    s_and_b32 s5, s5, 0xff
    s_mul_i32 s5, s5, 5120"""]
    for q in range(5):
        out.append(f"s_add_u32 m0, s5, {q*1024}\ns_nop 0\nbuffer_load_dwordx4 v{WO_V+q}, {sr(S_WO,4)}, s4 offen lds")
    return out


def main_setup(a):
    T = 32
    a.c("---- Wo DMA voffsets; cb = (wg>>3)&7")
    a("s_bfe_u32 s3, s2, 0x30003")
    a("s_mul_i32 s3, s3, 160")
    for q in range(5):
        a(f"""
        v_add_u32 v{T}, {64*q}, v{L}
        v_mul_u32_u24 v{T+1}, 205, v{T}
        v_lshrrev_b32 v{T+1}, 11, v{T+1}
        v_mul_u32_u24 v{T+1}, 1120, v{T+1}
        v_lshl_add_u32 v{T+1}, v{T}, 4, v{T+1}
        v_add_u32 v{WO_V+q}, s3, v{T+1}
        """)
    a.c("---- Wo fragment LDS addresses")
    a(f"""
    v_lshrrev_b32 v{T}, 4, v{L}
    v_bfe_u32 v{T+1}, v{L}, 2, 2
    v_lshl_add_u32 v{T}, v{T}, 3, v{T+1}
    v_mul_u32_u24 v{T}, 160, v{T}
    v_and_b32 v{T+1}, 3, v{L}
    s_lshr_b32 s{sKH}, s{S_WAVE}, 1
    s_mul_i32 s3, s{sKH}, 5120
    v_add_u32 v{T}, s3, v{T}
    v_lshl_add_u32 v{OP_WA}, v{T+1}, 4, v{T}
    v_lshl_add_u32 v{OP_WA+1}, v{T+1}, 3, v{T}
    v_add_u32 v{OP_WA+2}, 40960, v{OP_WA}
    v_add_u32 v{OP_WA+3}, 40960, v{OP_WA+1}
    """)
    a.c("---- attention mapping  hp = 2*xcd + (idx>>4), rb = idx & 15")
    a(f"""
    s_and_b32 s3, s2, 7
    s_lshl_b32 s{sHP}, s3, 1
    s_lshr_b32 s4, s2, 7
    s_add_u32 s{sHP}, s{sHP}, s4
    s_bfe_u32 s{sRB_A}, s2, 0x40003
    s_and_b32 s3, s{S_WAVE}, 1
    s_mul_i32 s4, s{sHP}, 5
    s_mul_i32 s{sO1}, s3, 3
    s_add_u32 s{sO1}, s{sO1}, s4
    s_add_u32 s{sO2}, s4, 2
    s_lshl_b32 s{sF1}, s{sO1}, 3
    s_lshl_b32 s{sF2}, s{sO2}, 3
    s_lshl_b32 s4, s3, 2
    s_add_u32 s{sF2}, s{sF2}, s4
    s_lshl_b32 s{sO1}, s{sO1}, 15
    s_lshl_b32 s{sO2}, s{sO2}, 15
    s_lshl_b32 s4, s3, 3
    s_add_u32 s{sO2}, s{sO2}, s4
    v_and_b32 v{T}, 31, v{L}
    v_lshrrev_b32 v{T+1}, 5, v{L}
    v_lshlrev_b32 v{T+2}, 15, v{T+1}
    v_lshl_add_u32 v{T+2}, v{T}, 4, v{T+2}
    v_add_u32 v{AT_VK1}, s{sO1}, v{T+2}
    v_lshl_add_u32 v{AT_VK2}, v{T}, 4, s{sO2}
    v_lshl_add_u32 v{AT_VQ2}, v{L}, 4, s{sO2}
    """)
    a.c("V lane address: row rho -> feature; rows 20,24,28 -> ones; other pad rows out of range (zeros)")
    a(f"""
    v_bfe_u32 v{T+2}, v{L}, 2, 1
    v_lshlrev_b32 v{T+2}, 3, v{T+2}
    v_bfe_u32 v{T+3}, v{L}, 3, 1
    v_lshl_add_u32 v{T+2}, v{T+3}, 2, v{T+2}
    v_add_u32 v{T+2}, s{sF1}, v{T+2}
    v_mov_b32 v{T+3}, s{sF2}
    s_mov_b32 vcc_lo, 0x0000ffff
    s_mov_b32 vcc_hi, 0x0000ffff
    v_cndmask_b32 v{T+2}, v{T+3}, v{T+2}, vcc
    v_and_b32 v{T+3}, 3, v{L}
    v_add_u32 v{T+2}, v{T+2}, v{T+3}
    v_lshrrev_b32 v{T+3}, 7, v{T+2}
    v_and_b32 v{T+2}, 127, v{T+2}
    v_mov_b32 v{T+4}, 128
    s_mov_b32 vcc_lo, 0x000fffff
    s_mov_b32 vcc_hi, 0x000fffff
    v_cndmask_b32 v{T+2}, v{T+4}, v{T+2}, vcc
    s_mov_b32 s3, {V_C}
    v_mul_lo_u32 v{T+3}, v{T+3}, s3
    v_lshl_add_u32 v{T+2}, v{T+2}, 4, v{T+3}
    v_mul_u32_u24 v{T+1}, {V_H}, v{T+1}
    v_add_u32 v{T+2}, v{T+2}, v{T+1}
    v_add_u32 v{T+2}, {WS_V}, v{T+2}
    s_mov_b32 vcc_lo, 0xeee00000
    s_mov_b32 vcc_hi, 0xeee00000
    v_mov_b32 v{T+4}, 0x40000000
    v_cndmask_b32 v{AT_VV}, v{T+2}, v{T+4}, vcc
    s_and_b32 s{sBLK}, s{sRB_A}, 7
    """)
    a.c("poll addresses: lanes<32: grp=l>>3 (Ka,Kb,Va,Vb), rb = 8kh+(l&7); lanes>=32: Q tile (l&1), own rb")
    a(f"""
    s_mul_i32 s3, s{sHP}, 40
    s_add_u32 s4, s3, 39
    s_lshr_b32 s3, s3, 7
    s_lshr_b32 s4, s4, 7
    s_cmp_eq_u32 s3, s4
    s_cselect_b32 s34, 0x00ff00ff, -1
    s_cselect_b32 s35, 1, 3
    v_mov_b32 v{T}, s3
    v_mov_b32 v{T+1}, s4
    s_mov_b32 vcc_lo, 0xff00ff00
    s_mov_b32 vcc_hi, 0xaaaaaaaa
    v_cndmask_b32 v{T}, v{T}, v{T+1}, vcc
    v_bfe_u32 v{T+1}, v{L}, 4, 1
    v_mad_u32_u24 v{T+1}, v{T+1}, 5, 5
    v_and_b32 v{T+2}, 7, v{L}
    s_lshl_b32 s3, s{sKH}, 3
    v_add_u32 v{T+2}, s3, v{T+2}
    v_mov_b32 v{T+3}, s{sRB_A}
    s_mov_b32 vcc_lo, -1
    s_mov_b32 vcc_hi, 0
    v_cndmask_b32 v{T+1}, 0, v{T+1}, vcc
    v_cndmask_b32 v{T+2}, v{T+3}, v{T+2}, vcc
    v_add_u32 v{T}, v{T}, v{T+1}
    v_lshlrev_b32 v{T}, 11, v{T}
    v_lshl_add_u32 v{T}, v{T+2}, 7, v{T}
    v_add_u32 v{V_PG1}, {F_G1}, v{T}
    s_mul_i32 s{S_FO}, s{sRB_A}, {F_SP}
    s_add_u32 s{S_FO}, s{S_FO}, s{sHP}
    s_add_u32 s{S_FO}, s{S_FO}, {F_O}
    """)


def phase_g1(a):
    sRB, sCJ, sX, sWo, sT0, sT1, sWM, sWN, sLB = 36, 37, 38, 39, 40, 41, 42, 43, 33
    done, idle = a.label("g1_done"), a.label("g1_idle")
    VX, VW = 4, 8
    XA, XB = 12, 16
    WA, WB = 20, 22
    T = 24
    ACC = 48
    FR = 112
    a.c("---- G1: tile mapping")
    a(f"""
    s_and_b32 s{sRB}, s2, 1
    s_lshl_b32 s{sRB}, s{sRB}, 3
    s_bfe_u32 s{sX}, s2, 0x30003
    s_add_u32 s{sRB}, s{sRB}, s{sX}
    s_bfe_u32 s{sCJ}, s2, 0x20001
    s_lshl_b32 s{sCJ}, s{sCJ}, 2
    s_lshr_b32 s{sWo}, s2, 6
    s_add_u32 s{sCJ}, s{sCJ}, s{sWo}
    s_mul_i32 s{sX}, s{sX}, 5
    s_mul_i32 s{sWo}, s{sWo}, 10
    s_add_u32 s{sX}, s{sX}, s{sWo}
    s_lshr_b32 s{sX}, s{sX}, 2
    s_cmp_ge_u32 s{sX}, 10
    s_cselect_b32 s{sT0}, 10, 0
    s_sub_u32 s{sX}, s{sX}, s{sT0}
    s_mul_i32 s{sWo}, s{sX}, 245760
    s_lshl_b32 s{sX}, s{sX}, 7
    s_lshl_b32 s{sLB}, s{S_WAVE}, 10
    v_lshrrev_b32 v{T}, 3, v0
    s_lshl_b32 s{sT0}, s{sRB}, 7
    v_add_u32 v{T}, s{sT0}, v{T}
    v_mul_u32_u24 v{T}, 1280, v{T}
    v_lshrrev_b32 v{T+1}, 4, v0
    v_xor_b32 v{T+2}, v{T+1}, v0
    v_and_b32 v{T+2}, 7, v{T+2}
    v_lshl_add_u32 v{VX}, v{T+2}, 4, v{T}
    v_add_u32 v{VX+1}, 40960, v{VX}
    v_add_u32 v{VX+2}, 81920, v{VX}
    v_add_u32 v{VX+3}, 122880, v{VX}
    v_mul_u32_u24 v{T}, 3840, v{T+1}
    v_lshlrev_b32 v{T+2}, 2, v{T+1}
    v_xor_b32 v{T+2}, v{T+2}, v0
    v_and_b32 v{T+2}, 15, v{T+2}
    v_lshl_add_u32 v{T}, v{T+2}, 4, v{T}
    s_lshl_b32 s{sT0}, s{sCJ}, 8
    v_add_u32 v{VW}, s{sT0}, v{T}
    v_add_u32 v{VW+1}, 61440, v{VW}
    v_add_u32 v{VW+2}, 122880, v{VW}
    v_add_u32 v{VW+3}, 184320, v{VW}
    s_cmp_eq_u32 s{sCJ}, 15
    s_waitcnt lgkmcnt(0)
    s_cbranch_scc1 {idle}
    """)
    if 'nomain' in EXP:
        a("s_endpgm")

    def issue_item(n):
        out = []
        slot = n % 5
        isx = (n % 2 == 0)
        for i in range(4):
            g = f"s_add_u32 m0, s{sLB}, {slot*16384 + i*4096}\ns_nop 0\n"
            if isx:
                g += f"buffer_load_dwordx4 v{VX+i}, {sr(S_X,4)}, s{sX} offen lds"
            else:
                g += f"buffer_load_dwordx4 v{VW+i}, {sr(S_W,4)}, s{sWo} offen lds"
            out.append(g)
        if isx:
            out.append(f"s_add_u32 s{sX}, s{sX}, 128\ns_cmp_eq_u32 s{sX}, 1280\ns_cselect_b32 s{sX}, 0, s{sX}")
        else:
            out.append(f"s_add_u32 s{sWo}, s{sWo}, 245760\ns_cmp_eq_u32 s{sWo}, 2457600\ns_cselect_b32 s{sWo}, 0, s{sWo}")
        return out

    for n in range(2):
        for g in issue_item(n):
            a(g)
    a.c("x fragment addresses")
    a(f"""
    s_and_b32 s{sWM}, s{S_WAVE}, 1
    s_lshr_b32 s{sWN}, s{S_WAVE}, 1
    v_and_b32 v{T}, 31, v{L}
    v_lshrrev_b32 v{T+1}, 5, v{L}
    v_bfe_u32 v{T+2}, v{L}, 1, 3
    v_xor_b32 v{T+2}, v{T+2}, v{T+1}
    s_lshl_b32 s{sT0}, s{sWM}, 13
    v_lshl_add_u32 v{T}, v{T}, 7, s{sT0}
    """)
    for ks in range(4):
        a(f"v_xor_b32 v{T+3}, {2*ks}, v{T+2}")
        a(f"v_lshl_add_u32 v{XA+ks}, v{T+3}, 4, v{T}")
        a(f"v_add_u32 v{XB+ks}, 0x10000, v{XA+ks}")
    for g in issue_item(2):
        a(g)
    a.c("W fragment addresses")
    a(f"""
    v_bfe_u32 v{T}, v{L}, 2, 2
    v_lshrrev_b32 v{T+1}, 5, v{L}
    v_lshl_add_u32 v{T+1}, v{T+1}, 3, v{T}
    v_lshlrev_b32 v{T+1}, 8, v{T+1}
    v_bfe_u32 v{T+2}, v{L}, 4, 1
    v_lshl_add_u32 v{T+1}, v{T+2}, 5, v{T+1}
    v_and_b32 v{T+2}, 3, v{L}
    v_and_b32 v{T+3}, 1, v{L}
    v_bfe_u32 v{T+4}, v{L}, 1, 1
    v_lshl_add_u32 v{T+3}, v{T+3}, 1, v{T+4}
    s_cmp_ge_u32 s{sCJ}, 10
    s_cselect_b64 vcc, -1, 0
    v_cndmask_b32 v{T+2}, v{T+3}, v{T+2}, vcc
    v_lshl_add_u32 v{T+1}, v{T+2}, 3, v{T+1}
    s_lshl_b32 s{sT0}, s{sWN}, 1
    """)
    for fn in range(2):
        a(f"s_add_u32 s{sT1}, s{sT0}, {fn}")
        a(f"v_xor_b32 v{T+3}, s{sT1}, v{T}")
        a(f"v_lshl_add_u32 v{WA+fn}, v{T+3}, 6, v{T+1}")
        a(f"v_add_u32 v{WB+fn}, 0x10000, v{WA+fn}")
    main_setup(a)
    a(f"""
    s_lshl_b32 s3, s2, 7
    s_add_u32 s3, s3, {F_H}
    s_lshl_b32 s4, s{S_WAVE}, 28
    s_or_b32 s3, s3, s4
    v_mov_b32 v{T+8}, s3
    v_mov_b32 v{T+9}, 1
    """)
    for g in issue_item(3):
        a(g)

    def xf(s, ks, tm):
        return FR + 64 * (s % 2) + ks * 16 + tm * 4

    def wf(s, ks, fn):
        return FR + 64 * (s % 2) + ks * 16 + 8 + fn * 4

    def reads(s):
        out = []
        sx, sw = (2 * s) % 5, (2 * s + 1) % 5
        for ks in range(4):
            for tm in range(2):
                base, off = (XA, sx * 16384) if sx < 4 else (XB, 0)
                out.append(f"ds_read_b128 {vr(xf(s,ks,tm),4)}, v{base+ks} offset:{off + tm*4096}")
            for fn in range(2):
                base, off = (WA, sw * 16384) if sw < 4 else (WB, 0)
                for e in range(2):
                    out.append(f"ds_read_b64_tr_b16 {vr(wf(s,ks,fn)+2*e,2)}, v{base+fn} offset:{off + ks*4096 + e*1024}")
        return out

    def mfmas(s, isv):
        out = []
        for ks in range(4):
            for fn in range(2):
                for tm in range(2):
                    acc = ACC + (fn * 2 + tm) * 16
                    A_, B_ = (xf(s, ks, tm), wf(s, ks, fn)) if isv else (wf(s, ks, fn), xf(s, ks, tm))
                    c = "0" if (s == 0 and ks == 0) else vr(acc, 16)
                    out.append(f"v_mfma_f32_32x32x16_bf16 {vr(acc,16)}, {vr(A_,4)}, {vr(B_,4)}, {c}")
        return out

    def mainloop(isv):
        n0 = _stamp_n[0]
        for s in range(10):
            if s <= 8:
                allowed = 8
            else:
                allowed = 10
            if s - 1 == HINT_STAGE:
                allowed += 1
            a(f"s_waitcnt vmcnt({allowed})")
            a("s_barrier")
            if s == PRIO_STAGE:
                a("s_setprio 3")
            if s in (0, 5):
                stamp(a)
            rd = reads(s)
            if s <= 7:
                g1, g2 = issue_item(2 * s + 4), issue_item(2 * s + 5)
            elif s == 8:
                g1, g2 = wo_round(WO_R_A), wo_round(WO_R_B)
            else:
                g1, g2 = wo_round(WO_R_C), []
            m = mfmas(s - 1, isv) if s > 0 else [""] * 16
            if 'g1nomfma' in EXP:
                m = [""] * 16
            if 'g1nord' in EXP:
                rd = [""] * 24
            if 'g1nodma' in EXP:
                g1 = [x.replace("buffer_load", ";buffer_load") for x in g1]
                g2 = [x.replace("buffer_load", ";buffer_load") for x in g2]
            fill = [[] for _ in range(16)]
            for i in range(8):
                fill[i] += rd[3 * i:3 * i + 3]
            p1 = [1, 3, 5, 7, 8, 9] if len(g1) == 5 else [0, 2, 4, 6, 8, 9]
            for k, g in enumerate(g1):
                fill[p1[k]].append(g)
            if g2:
                fill[9].append("s_waitcnt lgkmcnt(0)\ns_barrier")
            p2 = [10, 11, 13, 14, 15, 15] if len(g2) == 5 else [10, 11, 12, 13, 14, 15]
            for k, g in enumerate(g2):
                fill[p2[k]].append(g)
            if not g2:
                fill[15].append("s_waitcnt lgkmcnt(0)")
            if s == HINT_STAGE:
                fill[HINT_POS].append(f"""s_mov_b64 exec, 1
                buffer_store_dword v{T+9}, v{T+8}, {sr(S_WS,4)}, 0 offen sc1
                s_mov_b64 exec, -1""")
            for i in range(16):
                a(m[i])
                for x in fill[i]:
                    a(x)
        for x in mfmas(9, isv):
            a(x)
        stamp(a)
        if not isv:
            stamp_reset(n0)

    lv = a.label("g1_v")
    a(f"s_cmp_ge_u32 s{sCJ}, 10")
    a(f"s_cbranch_scc1 {lv}")
    qs = (20 ** -0.5) * math.log2(math.e)
    a(f"""
    s_cmp_lt_u32 s{sCJ}, 5
    s_cselect_b32 s6, {f2u(qs):#x}, 1.0
    s_mov_b32 s7, s6
    s_lshl_b32 s{sT1}, s{sCJ}, 4
    s_lshl_b32 s{sT0}, s{sWN}, 3
    s_add_u32 s{sT1}, s{sT1}, s{sT0}
    s_lshl_b32 s{sT1}, s{sT1}, 15
    s_lshl_b32 s{sT0}, s{sRB}, 11
    s_add_u32 s{sT1}, s{sT1}, s{sT0}
    s_lshl_b32 s{sT0}, s{sWM}, 10
    s_add_u32 s{sT1}, s{sT1}, s{sT0}
    v_and_b32 v{T}, 31, v{L}
    v_lshrrev_b32 v{T+1}, 5, v{L}
    v_lshlrev_b32 v{T+1}, 15, v{T+1}
    v_lshl_add_u32 v{T}, v{T}, 4, v{T+1}
    """)
    mainloop(False)
    a.c("Q/K epilogue")
    a("s_nop 8")
    assert WS_K == WS_Q + 80 * 32768 and WS_Q == 0
    for fn in range(2):
        for tm in range(2):
            acc = ACC + (fn * 2 + tm) * 16
            for half in range(2):
                d = FR + ((fn * 2 + tm) * 2 + half) * 4
                for i in range(4):
                    a(f"v_pk_mul_f32 {vr(acc+half*8+2*i,2)}, {vr(acc+half*8+2*i,2)}, s[6:7]")
                for i in range(4):
                    a(f"v_cvt_pk_bf16_f32 v{d+i}, v{acc+half*8+2*i}, v{acc+half*8+2*i+1}")
                a(f"s_add_u32 s{sX}, s{sT1}, {(fn*4+half*2)*32768}")
                a(f"buffer_store_dwordx4 {vr(d,4)}, v{T}, {sr(S_WS,4)}, s{sX} offen offset:{tm*512}{SC}")
    a(f"s_branch {done}")
    a(f"{lv}:")
    a(f"""
    s_sub_u32 s{sT1}, s{sCJ}, 10
    s_mul_i32 s{sT1}, s{sT1}, {V_C}
    s_mul_i32 s{sT0}, s{sRB}, {4*V_T}
    s_add_u32 s{sT1}, s{sT1}, s{sT0}
    s_add_u32 s{sT1}, s{sT1}, {WS_V}
    s_mul_i32 s6, s{S_WAVE}, {V_T}
    s_add_u32 s6, s6, s{sT1}
    s_mul_i32 s{sT0}, s{sWM}, {2*V_T}
    s_add_u32 s{sT1}, s{sT1}, s{sT0}
    s_lshl_b32 s{sT0}, s{sWN}, 10
    s_add_u32 s{sT1}, s{sT1}, s{sT0}
    s_add_u32 s{sT0}, s{sT1}, {V_T}
    v_and_b32 v{T}, 31, v{L}
    v_lshrrev_b32 v{T+1}, 5, v{L}
    v_mul_u32_u24 v{T+1}, {V_H}, v{T+1}
    v_lshl_add_u32 v{T}, v{T}, 4, v{T+1}
    v_lshrrev_b32 v{T+2}, 3, v{L}
    v_mul_u32_u24 v{T+2}, {V_M}, v{T+2}
    v_and_b32 v{T+1}, 7, v{L}
    v_lshl_add_u32 v{T+2}, v{T+1}, 4, v{T+2}
    v_mov_b32 v{T+4}, 0x3f803f80
    v_mov_b32 v{T+5}, 0x3f803f80
    v_mov_b32 v{T+6}, 0x3f803f80
    v_mov_b32 v{T+7}, 0x3f803f80
    """)
    mainloop(True)
    a.c("V epilogue; ones rows: wave w writes the 4 rows of token tile w (lanes 0..31)")
    a(f"""
    s_mov_b32 exec_hi, 0
    buffer_store_dwordx4 {vr(T+4,4)}, v{T+2}, {sr(S_WS,4)}, s6 offen offset:2048{SC}
    s_mov_b32 exec_hi, -1
    s_nop 5
    """)
    for fn in range(2):
        for tm in range(2):
            acc = ACC + (fn * 2 + tm) * 16
            for m in range(2):
                d = FR + ((fn * 2 + tm) * 2 + m) * 4
                for i in range(4):
                    a(f"v_cvt_pk_bf16_f32 v{d+i}, v{acc+m*8+2*i}, v{acc+m*8+2*i+1}")
                a(f"buffer_store_dwordx4 {vr(d,4)}, v{T}, {sr(S_WS,4)}, s{sT0 if tm else sT1} offen offset:{m*V_M + fn*512}{SC}")
    a(f"{done}:")
    a(f"""
    s_setprio 3
    v_mov_b32 v3, {DBG_CLR}
    buffer_load_dword v2, v3, {sr(S_DBG,4)}, 0 offen sc1
    s_lshl4_add_u32 s{S_FG1}, s{sCJ}, s{sRB}
    s_lshl_b32 s{S_FG1}, s{S_FG1}, 7
    s_add_u32 s{S_FG1}, s{S_FG1}, {F_G1}
    """)
    return idle, done


def g1_idle(a, idle, done):
    sRB = 36
    a(f"{idle}:")
    noclr = a.label("noclr")
    a.c("the 16 tile-less workgroups clear the flag lines (20 each); the last one to finish sets the cleared word")
    a(f"""
    s_cmp_lg_u32 s{S_WAVE}, 0
    s_cbranch_scc1 {noclr}
    s_mul_i32 s3, s{sRB}, {20*128}
    s_add_u32 s3, s3, {WS_FLAG}
    v_lshlrev_b32 v10, 7, v{L}
    v_mov_b32 v4, 0
    v_mov_b32 v5, 0
    v_mov_b32 v6, 0
    v_mov_b32 v7, 0
    s_mov_b64 exec, 0xfffff
    buffer_store_dwordx4 v[4:7], v10, {sr(S_WS,4)}, s3 offen sc1
    v_mov_b32 v8, 1
    v_mov_b32 v9, 1
    s_mov_b64 exec, 1
    s_waitcnt vmcnt(0)
    buffer_atomic_add v8, v4, {sr(S_DBG,4)}, 0 offen sc0 sc1
    s_waitcnt vmcnt(0)
    v_cmp_eq_u32 vcc, 15, v8
    s_cbranch_vccz {noclr}x
    buffer_store_dword v9, v4, {sr(S_DBG,4)}, 0 offen offset:{DBG_CLR} sc1
    {noclr}x:
    s_mov_b64 exec, -1
    {noclr}:
    """)
    a("s_barrier")
    if 'nomain' in EXP:
        a("s_endpgm")
    main_setup(a)
    for r in (WO_R_A, WO_R_B, WO_R_C):
        for g in wo_round(r):
            a(g)
    a("s_waitcnt vmcnt(0)")
    a(f"s_branch {done}")


AT_O, AT_SA, AT_SB, AT_P = 16, 80, 112, 144
AT_Q1, AT_Q2 = 160, 176
AT_KV = 180
WPRE = 80


def kv(b):
    base = AT_KV + 14 * (b % 4)
    return dict(K1=base, V0=base + 4, V1=base + 8, K2=base + 12)


def ldK(b, sreg, i):
    r = kv(b)
    return [f"buffer_load_dwordx4 {vr(r['K1'],4)}, v{AT_VK1}, {sr(S_WS,4)}, s{sreg} offen offset:{512*i}{SC}",
            f"buffer_load_dwordx2 {vr(r['K2'],2)}, v{AT_VK2}, {sr(S_WS,4)}, s{sreg} offen offset:{512*i}{SC}"]


def ldV(b):
    r = kv(b)
    return [f"buffer_load_dwordx4 {vr(r['V0'],4)}, v{AT_VV}, {sr(S_WS,4)}, s{sVO} offen{SC}",
            f"buffer_load_dwordx4 {vr(r['V1'],4)}, v{AT_VV}, {sr(S_WS,4)}, s{sVO} offen offset:{V_M}{SC}"]


def qk2b(buf, b, pair):
    return f"v_mfma_f32_32x32x4_2b_bf16 {vr(buf,32)}, {vr(kv(b)['K2'],2)}, {vr(AT_Q2+2*pair,2)}, 0"


def qk1(buf, b, pair, t):
    d = buf + 16 * t
    return f"v_mfma_f32_32x32x16_bf16 {vr(d,16)}, {vr(kv(b)['K1'],4)}, {vr(AT_Q1+4*(2*pair+t),4)}, {vr(d,16)}"


def pv(b, m, qt, pi):
    o = AT_O + 16 * qt
    return f"v_mfma_f32_32x32x16_bf16 {vr(o,16)}, {vr(kv(b)['V%d' % m],4)}, {vr(AT_P+4*pi,4)}, {vr(o,16)}"


def at_pre(a):
    for i in range(64):
        a(f"v_mov_b32 v{AT_O+i}, 0")
    for i in range(4):
        a(f"v_mov_b32 v{AT_P+12+i}, 0")
        a(f"v_mov_b32 v{kv(3)['V1']+i}, 0")
    a(f"""
    s_lshl3_add_u32 s{sT0A}, s{sKH}, s{sBLK}
    s_lshl_b32 s{sKB}, s{sT0A}, 11
    s_add_u32 s{sKB}, s{sKB}, {WS_K}
    s_mul_i32 s{sVO}, s{sT0A}, {4*V_T}
    s_add_u32 s{sBLK}, s{sBLK}, 1
    s_and_b32 s{sBLK}, s{sBLK}, 7
    s_lshl3_add_u32 s{sT0A}, s{sKH}, s{sBLK}
    s_lshl_b32 s{sKN}, s{sT0A}, 11
    s_add_u32 s{sKN}, s{sKN}, {WS_K}
    s_mov_b32 s{sIT}, 8
    s_lshl_b32 s60, s{sRB_A}, 11
    s_lshl_b32 s3, s{sKH}, 10
    s_add_u32 s60, s60, s3
    s_xor_b32 s61, s60, 1024
    """)


def phase_at(a):
    T = 4
    a.c("---- AT: Q loads and first K/V tiles")
    for x in ldK(0, sKB, 0):
        a(x)
    for p in range(2):
        a(f"buffer_load_dwordx2 {vr(AT_Q2+2*p,2)}, v{AT_VQ2}, {sr(S_WS,4)}, s{60+p} offen{SC}")
        for t in range(2):
            a(f"buffer_load_dwordx4 {vr(AT_Q1+4*(2*p+t),4)}, v{AT_VK1}, {sr(S_WS,4)}, s{60+p} offen offset:{512*t}{SC}")
    for x in ldV(0):
        a(x)
    a(f"s_add_u32 s{sVO}, s{sVO}, {V_T}")
    for x in ldK(1, sKB, 1):
        a(x)
    for x in ldV(1):
        a(x)
    a(f"s_add_u32 s{sVO}, s{sVO}, {V_T}")
    for x in ldK(2, sKB, 2):
        a(x)
    a("s_waitcnt vmcnt(11)")
    stamp(a)
    stamp(a, cyc=True)
    a(qk2b(AT_SA, 0, 0))
    a("s_nop 15")
    a("s_nop 1")
    a(qk1(AT_SA, 0, 0, 0))
    a(qk1(AT_SA, 0, 0, 1))
    a("s_nop 9")
    a("s_waitcnt vmcnt(8)")

    loop = a.label("at_loop")
    a(".p2align 6")
    a(f"{loop}:")
    for st in range(4):
        for pair in range(2):
            X, Y = (AT_SA, AT_SB) if pair == 0 else (AT_SB, AT_SA)
            nb, npair = (st, 1) if pair == 0 else (st + 1, 0)
            pb, pqt = (st - 1, 3) if pair == 0 else (st, 1)
            if pair == 0:
                lv = ldV(st + 2)
                if st + 2 == 3:
                    adv = f"s_mul_i32 s{sVO}, s{sT0A}, {4*V_T}"
                else:
                    adv = f"s_add_u32 s{sVO}, s{sVO}, {V_T}"
                free = [None, "s_waitcnt vmcnt(6)", lv[0], lv[1], adv, None, "s_waitcnt vmcnt(6)"]
            else:
                lk = ldK(st + 3, sKB, st + 3) if st + 3 < 4 else ldK(st + 3, sKN, st + 3 - 4)
                free = [lk[0], lk[1]] + [None] * 5
                if st == 2:
                    free[2:] = [f"s_add_u32 s{sBLK}, s{sBLK}, 1", f"s_and_b32 s{sBLK}, s{sBLK}, 7",
                                f"s_lshl3_add_u32 s{sT0A}, s{sKH}, s{sBLK}", f"s_lshl_b32 s{sKN2}, s{sT0A}, 11",
                                f"s_add_u32 s{sKN2}, s{sKN2}, {WS_K}"]
                if st == 3:
                    free[2:] = [f"s_mov_b32 s{sKB}, s{sKN}", f"s_mov_b32 s{sKN}, s{sKN2}", f"s_sub_u32 s{sIT}, s{sIT}, 1",
                                None, f"s_cmp_lg_u32 s{sIT}, 0"]
            M = [qk2b(Y, nb, npair), pv(pb, 1, pqt, 3), pv(st, 0, 2 * pair, 0), qk1(Y, nb, npair, 0),
                 pv(st, 1, 2 * pair, 1), qk1(Y, nb, npair, 1), pv(st, 0, 2 * pair + 1, 2)]
            pos = {0: 0, 7: 1, 14: 2, 19: 3, 26: 4, 31: 5, 39: 6}
            V = []
            for g in range(4):
                base = X + 8 * g
                V += [f"v_exp_f32 v{base+i}, v{base+i}" for i in range(8)]
                V += [f"v_cvt_pk_bf16_f32 v{AT_P+4*g+i}, v{base+2*i}, v{base+2*i+1}" for i in range(4)]
            for i, x in enumerate(V):
                if i in pos:
                    k = pos[i]
                    a(M[k])
                    if free[k]:
                        a(free[k])
                a(x)
    a(f"s_cbranch_scc1 {loop}")
    a(f"s_mul_i32 s3, s{S_WAVE}, 6144")
    a(f"s_add_u32 s3, s3, {CMB_OFF}")
    a(pv(3, 1, 3, 3))
    stamp(a)
    stamp(a, cyc=True)
    a.c("---- AT: combine the two key halves: keep local tiles 0,1; send local tiles 2,3")
    a(f"v_lshl_add_u32 v{T}, v{L}, 4, s3")
    for g in range(3):
        a(f"ds_write_b128 v{T}, {vr(AT_O+32+4*g,4)} offset:{g*1024}")
    a(f"""
    s_xor_b32 s3, s{S_WAVE}, 2
    s_mul_i32 s3, s3, 6144
    s_add_u32 s3, s3, {CMB_OFF}
    v_lshl_add_u32 v{T+1}, v{L}, 4, s3
    v_or_b32 v{T+2}, 32, v{L}
    v_lshl_add_u32 v{T+2}, v{T+2}, 4, s3
    s_add_u32 s60, s60, {WS_O}
    s_nop 0
    """)
    for g in range(3):
        a(f"ds_write_b128 v{T}, {vr(AT_O+48+4*g,4)} offset:{(3+g)*1024}")
    a("s_waitcnt lgkmcnt(0)")
    a("s_barrier")
    R = AT_O + 32
    for t in range(2):
        a(f"ds_read_b32 v{R+16*t+12}, v{T+2} offset:{(t*3+2)*1024}")
        for g in range(3):
            a(f"ds_read_b128 {vr(R+16*t+4*g,4)}, v{T+1} offset:{(t*3+g)*1024}")
    for t in range(2):
        o = AT_O + 16 * t
        a(f"s_waitcnt lgkmcnt({4-4*t})")
        a(f"v_add_f32 v{o+12}, v{o+12}, v{R+16*t+12}")
        for i in range(6):
            a(f"v_pk_add_f32 {vr(o+2*i,2)}, {vr(o+2*i,2)}, {vr(R+16*t+2*i,2)}")
    a.c("run-time guard of the un-shifted exponentials: row sums well inside the fp32 range and finite accumulators")
    slow, back = a.label("at_slow"), a.label("at_back")
    o0, o1 = AT_O, AT_O + 16
    a(f"v_pk_add_f32 {vr(T,2)}, {vr(o0,2)}, {vr(o0+2,2)}")
    a(f"v_pk_add_f32 {vr(T+2,2)}, {vr(o1,2)}, {vr(o1+2,2)}")
    for i in (4, 6, 8, 10):
        a(f"v_pk_add_f32 {vr(T,2)}, {vr(T,2)}, {vr(o0+i,2)}")
        a(f"v_pk_add_f32 {vr(T+2,2)}, {vr(T+2,2)}, {vr(o1+i,2)}")
    a(f"v_min_f32 v{T+4}, v{o0+12}, v{o1+12}")
    a(f"v_pk_add_f32 {vr(T,2)}, {vr(T,2)}, {vr(T+2,2)}")
    a(f"v_add_f32 v{T+5}, v{o0+12}, v{o1+12}")
    a(f"v_cmp_nlt_f32 vcc, {f2u(2.0**-40):#x}, v{T+4}")
    a(f"v_add_f32 v{T}, v{T}, v{T+1}")
    a(f"s_mov_b64 s[4:5], vcc")
    a(f"v_fma_f32 v{T+5}, v{T}, 0, v{T+5}")
    a(f"v_cmp_ngt_f32 vcc, {f2u(2.0**40):#x}, v{T+5}")
    a(f"s_or_b64 s[4:5], s[4:5], vcc")
    a(f"s_cbranch_scc1 {slow}")
    a(f"{back}:")
    for t in range(2):
        o = AT_O + 16 * t
        a(f"v_rcp_f32 v{o+14}, v{o+12}")
    for t in range(2):
        o = AT_O + 16 * t
        for i in range(6):
            a(f"v_pk_mul_f32 {vr(o+2*i,2)}, {vr(o+2*i,2)}, {vr(o+14,2)} op_sel_hi:[1,0]")
        for i in range(6):
            a(f"v_cvt_pk_bf16_f32 v{R+16*t+i}, v{o+2*i}, v{o+2*i+1}")
        a(f"buffer_store_dwordx4 {vr(R+16*t,4)}, v{AT_VK1}, {sr(S_WS,4)}, s60 offen offset:{512*t}{SC}")
    a("s_mov_b32 exec_hi, 0")
    for t in range(2):
        a(f"buffer_store_dwordx2 {vr(R+16*t+4,2)}, v{AT_VK2}, {sr(S_WS,4)}, s60 offen offset:{512*t}{SC}")
    a("s_mov_b32 exec_hi, -1")
    return slow, back


def at_slow(a, slow, back):
    M0, M1, T = 4, 5, 6
    a(f"{slow}:")
    a("s_waitcnt vmcnt(0)")
    a(f"v_mov_b32 v{M0}, 0xff800000")
    a(f"v_mov_b32 v{M1}, 0xff800000")
    for ps in range(2):
        lp = a.label("slow_loop")
        a(f"s_mov_b32 s{sKB}, {WS_K}")
        a(f"s_mov_b32 s{sVO}, 0")
        a(f"s_mov_b32 s{sIT}, 64")
        a(f"{lp}:")
        for x in ldK(0, sKB, 0):
            a(x)
        if ps == 1:
            for x in ldV(0):
                a(x)
        a("s_waitcnt vmcnt(0)")
        a(qk2b(AT_SA, 0, 0))
        a("s_nop 15")
        a("s_nop 1")
        a(qk1(AT_SA, 0, 0, 0))
        a(qk1(AT_SA, 0, 0, 1))
        a("s_nop 11")
        if ps == 0:
            for t, m in ((0, M0), (1, M1)):
                for i in range(8):
                    a(f"v_max3_f32 v{m}, v{m}, v{AT_SA+16*t+2*i}, v{AT_SA+16*t+2*i+1}")
        else:
            for t, m in ((0, M0), (1, M1)):
                for i in range(16):
                    a(f"v_sub_f32 v{AT_SA+16*t+i}, v{AT_SA+16*t+i}, v{m}")
            for i in range(32):
                a(f"v_exp_f32 v{AT_SA+i}, v{AT_SA+i}")
            for i in range(16):
                a(f"v_cvt_pk_bf16_f32 v{AT_P+i}, v{AT_SA+2*i}, v{AT_SA+2*i+1}")
            a("s_nop 1")
            a(pv(0, 0, 0, 0)); a(pv(0, 1, 0, 1)); a(pv(0, 0, 1, 2)); a(pv(0, 1, 1, 3))
        a(f"""
        s_add_u32 s{sKB}, s{sKB}, 512
        s_add_u32 s{sVO}, s{sVO}, {V_T}
        s_sub_u32 s{sIT}, s{sIT}, 1
        s_cmp_lg_u32 s{sIT}, 0
        s_cbranch_scc1 {lp}
        """)
        if ps == 0:
            for m in (M0, M1):
                a(f"""
                v_mov_b32 v{T}, v{m}
                v_mov_b32 v{T+1}, v{m}
                s_nop 1
                v_permlane32_swap_b32 v{T}, v{T+1}
                s_nop 1
                v_max_f32 v{m}, v{T}, v{T+1}
                """)
            for i in range(32):
                a(f"v_mov_b32 v{AT_O+i}, 0")
    a("s_nop 11")
    a(f"s_branch {back}")


OP_ACC = 200
OP_OF = 120
OP_WF = 16


def op_wreads(j, dst):
    s0, s1 = WO_SLOT[2 * j], WO_SLOT[2 * j + 1]
    assert s1 == s0 + 1, (j, s0, s1)
    off = s0 * 5120
    hi = 0
    if off >= 40960:
        off -= 40960
        hi = 2
    out = []
    for ct in range(5):
        for e in range(2):
            if ct < 4:
                areg, o = OP_WA + hi, (ct >> 1) * 64 + (ct & 1) * 8
            else:
                areg, o = OP_WA + 1 + hi, 128
            out.append(f"ds_read_b64_tr_b16 {vr(dst+4*ct+2*e,2)}, v{areg} offset:{off + o + e*640}")
    return out


def op_pre(a):
    T = 4
    a.c("---- OP: mapping tb64 = 4*xcd + (wg>>6), cb = (wg>>3)&7")
    a(f"""
    s_and_b32 s3, s2, 7
    s_lshl_b32 s44, s3, 2
    s_lshr_b32 s3, s2, 6
    s_add_u32 s44, s44, s3
    s_and_b32 s47, s{S_WAVE}, 1
    s_lshl_b32 s45, s44, 10
    s_lshl_b32 s3, s47, 9
    s_add_u32 s45, s45, s3
    s_lshl_b32 s3, s{sKH}, 17
    s_add_u32 s45, s45, s3
    s_add_u32 s45, s45, {WS_O}
    v_and_b32 v{T}, 15, v{L}
    v_lshrrev_b32 v{T+1}, 4, v{L}
    v_lshlrev_b32 v{T+2}, 15, v{T+1}
    v_lshl_add_u32 v{T+2}, v{T}, 4, v{T+2}
    s_lshl_b32 s3, s{sKH}, 8
    v_add_u32 v{T+4}, s3, v{T+2}
    v_xor_b32 v{T+5}, 256, v{T+4}
    s_lshl_b32 s46, s44, 6
    s_lshl_b32 s3, s47, 5
    s_add_u32 s46, s46, s3
    s_lshl_b32 s3, s{sKH}, 4
    s_add_u32 s46, s46, s3
    s_mul_i32 s46, s46, 2560
    s_bfe_u32 s3, s2, 0x30003
    s_mul_i32 s3, s3, 160
    s_add_u32 s46, s46, s3
    v_mul_u32_u24 v{T}, 2560, v{T}
    v_lshl_add_u32 v{T+7}, v{T+1}, 3, v{T}
    v_lshl_add_u32 v{T+6}, v{T+1}, 4, v{T}
    s_mul_i32 s3, s{S_WAVE}, 5120
    s_add_u32 s3, s3, {4*5120}
    v_lshl_add_u32 v{T+8}, v{L}, 4, s3
    s_xor_b32 s3, s{S_WAVE}, 2
    s_mul_i32 s3, s3, 5120
    s_add_u32 s3, s3, {4*5120}
    v_lshl_add_u32 v{T+9}, v{L}, 4, s3
    """)


def phase_op(a):
    T = 4
    for j in range(10):
        for t in range(2):
            a(f"buffer_load_dwordx4 {vr(OP_OF+(2*j+t)*4,4)}, v{T+4+t}, {sr(S_WS,4)}, s45 offen{SC}")
        if j < 9:
            a(f"s_add_u32 s45, s45, {8*32768}")
    stamp(a)

    def wreg(j):
        return WPRE + 20 * j if j < 2 else OP_WF + 20 * (j % 2)

    for x in op_wreads(2, wreg(2)):
        a(x)
    for j in range(10):
        nxt = op_wreads(j + 1, wreg(j + 1)) if (j + 1 >= 3 and j + 1 < 10) else []
        if j >= 2:
            a(f"s_waitcnt vmcnt({18-2*j}) lgkmcnt(0)")
        else:
            a(f"s_waitcnt vmcnt({18-2*j})")
        if j == 4:
            a("s_barrier")
        k = 0
        for ct in range(5):
            for t in range(2):
                acc = OP_ACC + (ct * 2 + t) * 4
                c = "0" if j == 0 else vr(acc, 4)
                a(f"v_mfma_f32_16x16x32_bf16 {vr(acc,4)}, {vr(wreg(j)+4*ct,4)}, {vr(OP_OF+(2*j+t)*4,4)}, {c}")
                if k < len(nxt):
                    a(nxt[k]); k += 1
    stamp(a)
    a.c("reduce the two k halves through slots 4..7: keep local token tile 0, send local tile 1")
    a("s_nop 3")
    for ct in range(5):
        a(f"ds_write_b128 v{T+8}, {vr(OP_ACC+ct*8+4,4)} offset:{ct*1024}")
    a("s_waitcnt lgkmcnt(0)")
    a("s_barrier")
    for ct in range(5):
        a(f"ds_read_b128 {vr(OP_ACC+ct*8+4,4)}, v{T+9} offset:{ct*1024}")
    D = OP_OF
    for ct in range(5):
        a(f"s_waitcnt lgkmcnt({4-ct})")
        for i in range(2):
            a(f"v_pk_add_f32 {vr(OP_ACC+ct*8+2*i,2)}, {vr(OP_ACC+ct*8+2*i,2)}, {vr(OP_ACC+ct*8+4+2*i,2)}")
        for i in range(2):
            a(f"v_cvt_pk_bf16_f32 v{D+2*ct+i}, v{OP_ACC+ct*8+2*i}, v{OP_ACC+ct*8+2*i+1}")
        if ct == 1:
            a(f"buffer_store_dwordx4 {vr(D,4)}, v{T+6}, {sr(S_OUT,4)}, s46 offen")
        if ct == 3:
            a(f"buffer_store_dwordx4 {vr(D+4,4)}, v{T+6}, {sr(S_OUT,4)}, s46 offen offset:64")
    a(f"buffer_store_dwordx2 {vr(D+8,2)}, v{T+7}, {sr(S_OUT,4)}, s46 offen offset:128")


S_U, S_LA, S_AI, S_CR, S_CI, S_LD, S_DS = 8, 12, 64, 68, 72, 76, 80
sG, sCG, sTBQ = 33, 34, 35
S_T = 36
SSM_WL = 20480
KA_OFF, KB_OFF, U_OFF = 0, 4160, 8320
T1_OFF = 16384
KG_PRM = 224
T1_R = 232
sLBs = 40


def ssm_start(a, code_bytes):
    first = ((S_LA, 32, 163840), (S_AI, 40, 163840), (S_CR, 48, 163840), (S_CI, 56, 163840))
    rest = ((S_U, 24, 2621440), (S_OUT, 80, 5242880), (S_DBG, 88, 256), (S_WS, 96, WS_SIZE))
    for base, off, n in first + ((S_LD, 64, 0), (S_DS, 72, 0)) + rest:
        a(f"s_load_dwordx2 {sr(base,2)}, s[0:1], {off}")
    a.c("pull the kernel's code into this XCD's L2 (512 B per wave)")
    a(f"""
    s_getpc_b64 s[6:7]
    pf_anchor:
    s_sub_u32 s6, s6, pf_anchor-{NAME}_kernel
    s_subb_u32 s7, s7, 0
    s_lshr_b32 s3, s2, 3
    s_lshl2_add_u32 s3, s3, s{S_WAVE}
    s_min_u32 s3, s3, {code_bytes//512 - 1}
    s_lshl_b32 s3, s3, 9
    v_lshl_add_u32 v7, v{L}, 3, s3
    global_load_dwordx2 v[248:249], v7, s[6:7]
    s_mov_b32 s{sG}, s2
    s_lshl2_add_u32 s4, s{sG}, s{S_WAVE}
    s_lshl_b32 s5, s4, 8
    s_lshr_b32 s4, s4, 1
    s_lshl_b32 s4, s4, 2
    v_lshlrev_b32 v2, 2, v{L}
    """)
    for base, off, n in first:
        srd(a, base, n)
    a(f"""
    s_waitcnt lgkmcnt(0)
    buffer_load_dword v{KG_PRM}, v2, {sr(S_LA,4)}, s5 offen
    buffer_load_dword v{KG_PRM+1}, v2, {sr(S_AI,4)}, s5 offen
    buffer_load_dword v{KG_PRM+2}, v2, {sr(S_CR,4)}, s5 offen
    buffer_load_dword v{KG_PRM+3}, v2, {sr(S_CI,4)}, s5 offen
    s_load_dword s54, {sr(S_LD,2)}, s4
    s_load_dword s55, {sr(S_DS,2)}, s4
    s_lshr_b32 s{sCG}, s{sG}, 4
    s_and_b32 s{sTBQ}, s{sG}, 15
    """)
    for base, off, n in rest:
        srd(a, base, n)
    a(f"""
    s_mov_b32 s60, 0x05040100
    s_mov_b32 s61, 0x07060302
    s_mul_i32 s{sLBs}, s{S_WAVE}, {SSM_WL}
    s_mul_i32 s62, s{sCG}, {F_SP}
    s_add_u32 s62, s62, {F_U}
    s_add_u32 s63, s62, s{sTBQ}
    s_add_u32 s59, s63, {F_Y-F_U}
    """)


def ssm_param_wait(a):
    a(f"""
    s_and_b32 s3, s{S_WAVE}, 1
    s_lshl_b32 s3, s3, 4
    s_waitcnt lgkmcnt(0)
    s_lshr_b32 s54, s54, s3
    s_lshr_b32 s55, s55, s3
    v_mov_b32 v{KG_PRM+4}, s54
    v_mov_b32 v{KG_PRM+5}, s55
    s_waitcnt vmcnt(0)
    """)


def ssm_u_warm(a):
    a(f"""
    s_lshl_b32 s{S_T}, s{sTBQ}, 7
    s_lshl_b32 s{S_T+1}, s{S_WAVE}, 5
    s_add_u32 s{S_T}, s{S_T}, s{S_T+1}
    s_mul_i32 s{S_T}, s{S_T}, 1280
    s_lshl_b32 s{S_T+1}, s{sCG}, 7
    s_add_u32 s53, s{S_T}, s{S_T+1}
    s_add_u32 s6, s{S_U}, s53
    s_addc_u32 s7, s{S_U+1}, 0
    """)
    out = []
    if 'warm' in EXP or 'warm1' in EXP:
        for r in range(32):
            for h in range(1 if 'warm1' in EXP else 2):
                out.append(f"s_load_dword s{48+(r%4)}, s[6:7], {1280*r + 64*h}")
    return out


def ssm_u_loads(a):
    a(f"""
    v_lshrrev_b32 v4, 3, v{L}
    v_and_b32 v5, 7, v{L}
    v_mul_u32_u24 v6, 5120, v4
    v_lshl_add_u32 v6, v5, 4, v6
    s_waitcnt lgkmcnt(0)
    """)
    for j in range(4):
        if 't1nold' not in EXP:
            a(f"buffer_load_dwordx4 {vr(T1_R+4*j,4)}, v6, {sr(S_U,4)}, s53 offen offset:{1280*j}")


def ssm_t1(a):
    T, R, P = 4, T1_R, 202
    a.c("---- SSM T1")
    a(f"""
    v_lshrrev_b32 v{T}, 3, v{L}
    v_and_b32 v{T+1}, 7, v{L}
    v_lshrrev_b32 v{T+3}, 4, v0
    v_xor_b32 v{T+3}, v{T+3}, v{T+1}
    v_lshlrev_b32 v{T+3}, 4, v{T+3}
    v_lshl_add_u32 v{T+3}, v{T+1}, 11, v{T+3}
    v_and_b32 v{T+4}, 1, v{T}
    v_lshl_add_u32 v{T+3}, v{T+4}, 3, v{T+3}
    s_lshl_b32 s{S_T+1}, s{S_WAVE}, 12
    v_lshl_add_u32 v{T}, v{L}, 4, s{S_T+1}
    s_lshl_b32 s{S_T}, s{sG}, 14
    s_add_u32 s{S_T}, s{S_T}, s{S_T+1}
    s_add_u32 s{S_T}, s{S_T}, {WS_UT}
    s_lshl_b32 s{S_T+1}, s{S_WAVE}, 1
    v_xor_b32 v{T+1}, s{S_T+1}, v{L}
    v_lshlrev_b32 v{T+1}, 4, v{T+1}
    v_xor_b32 v{T+2}, 16, v{T+1}
    s_waitcnt vmcnt(0)
    """)
    for d in range(4):
        for p in range(2):
            e = 2 * d + p
            a(f"v_perm_b32 v{P+2*e}, v{R+4+d}, v{R+d}, s{60+p}")
            a(f"v_perm_b32 v{P+2*e+1}, v{R+12+d}, v{R+8+d}, s{60+p}")
            a(f"ds_write_b64 v{T+3}, {vr(P+2*e,2)} offset:{256*e}")
    a("s_waitcnt lgkmcnt(0)")
    a("s_barrier")
    for i in range(4):
        a(f"ds_read_b128 {vr(R+4*i,4)}, v{T} offset:{1024*i}")
    for i in range(4):
        a(f"s_waitcnt lgkmcnt({3-i})")
        if 't1nost' not in EXP:
            a(f"buffer_store_dwordx4 {vr(R+4*i,4)}, v{T+1+(i>>1)}, {sr(S_WS,4)}, s{S_T} offen offset:{1024*i}{'' if 't1plain' in EXP else SC}")


def ssm_t2(a):
    T, R, P = 4, 16, 32
    a.c("---- SSM T2")
    a(f"""
    v_lshrrev_b32 v{T}, 4, v{L}
    v_and_b32 v{T+1}, 15, v{L}
    v_lshlrev_b32 v{T+2}, 10, v{T}
    v_lshl_add_u32 v{T+2}, v{T+1}, 4, v{T+2}
    s_lshl_b32 s{S_T}, s{sG}, 14
    s_lshl_b32 s{S_T+1}, s{S_WAVE}, 12
    s_add_u32 s{S_T}, s{S_T}, s{S_T+1}
    s_add_u32 s{S_T}, s{S_T}, {WS_YT}
    """)
    for j in range(4):
        a(f"buffer_load_dwordx4 {vr(R+4*j,4)}, v{T+2}, {sr(S_WS,4)}, s{S_T} offen offset:{256*j}{SC}")
    a(f"""
    v_lshrrev_b32 v{T+3}, 5, v0
    v_xor_b32 v{T+3}, v{T+3}, v{T+1}
    v_and_b32 v{T+3}, 7, v{T+3}
    v_lshlrev_b32 v{T+3}, 4, v{T+3}
    v_lshl_add_u32 v{T+3}, v{T+1}, 10, v{T+3}
    v_and_b32 v{T+4}, 1, v{T}
    v_lshl_add_u32 v{T+3}, v{T+4}, 3, v{T+3}
    v_lshlrev_b32 v{T}, 4, v{L}
    v_add_u32 v{T}, s{S_T+1}, v{T}
    s_lshl_b32 s{S_T}, s{sTBQ}, 7
    s_lshl_b32 s{S_T+1}, s{S_WAVE}, 5
    s_add_u32 s{S_T}, s{S_T}, s{S_T+1}
    s_mul_i32 s{S_T}, s{S_T}, 2560
    s_lshl_b32 s{S_T+1}, s{sCG}, 7
    s_add_u32 s{S_T}, s{S_T}, s{S_T+1}
    s_add_u32 s{S_T}, s{S_T}, 1280
    v_lshrrev_b32 v{T+1}, 3, v{L}
    v_mul_u32_u24 v{T+1}, 2560, v{T+1}
    s_lshl_b32 s{S_T+1}, s{S_WAVE}, 2
    v_xor_b32 v{T+2}, s{S_T+1}, v{L}
    v_and_b32 v{T+2}, 7, v{T+2}
    """)
    for i in range(4):
        a(f"v_xor_b32 v{T+4}, {i}, v{T+2}")
        a(f"v_lshl_add_u32 v{T+5+i}, v{T+4}, 4, v{T+1}")
    a("s_waitcnt vmcnt(0)")
    for d in range(4):
        for p in range(2):
            e = 2 * d + p
            a(f"v_perm_b32 v{P+2*e}, v{R+4+d}, v{R+d}, s{60+p}")
            a(f"v_perm_b32 v{P+2*e+1}, v{R+12+d}, v{R+8+d}, s{60+p}")
            a(f"ds_write_b64 v{T+3}, {vr(P+2*e,2)} offset:{128*e}")
    a("s_waitcnt lgkmcnt(0)")
    a("s_barrier")
    for i in range(4):
        a(f"ds_read_b128 {vr(R+4*i,4)}, v{T} offset:{1024*i}")
    for i in range(4):
        a(f"s_waitcnt lgkmcnt({3-i})")
        a(f"buffer_store_dwordx4 {vr(R+4*i,4)}, v{T+5+i}, {sr(S_OUT,4)}, s{S_T} offen")
        if i < 3:
            a(f"s_add_u32 s{S_T}, s{S_T}, {8*2560}")


KG = dict(vDT=218, vWA=219, vRA=220, AN=36, CC=58, YR=60, XR=124, TM=178, ROW=528)
U_R = 186


def xrow(h, r):
    return 8 * (r // 4) + 4 * h + (r % 4)


def kg_rows():
    rows = {}
    for r in range(9):
        rows.setdefault(r, []).append(xrow(0, r))
        rows.setdefault(256 + [0, 0, 2, 4, 4, 4, 6, 8, 8][r], []).append(xrow(1, r))
    for h in range(2):
        for i, off in enumerate((0, 4, 8)):
            rows.setdefault(512 + 256 * h + off, []).append(xrow(h, 9 + i))
        for i, off in enumerate((0, 8)):
            rows.setdefault(1024 + 256 * h + off, []).append(xrow(h, 12 + i))
            rows.setdefault(1536 + 256 * h + off, []).append(xrow(h, 14 + i))
    return rows


def ssm_kgen_valu(a, extra):
    LOG2E = f2u(math.log2(math.e))
    INV2PI = f2u(1.0 / (2 * math.pi))
    vDT, vWA, vRA, AN, CC, YR, XR, TM, ROW = (KG[k] for k in ("vDT", "vWA", "vRA", "AN", "CC", "YR", "XR", "TM", "ROW"))
    T = 8
    ARL, AIR = 16, 18
    RE, IM, T2, T3 = (20, 28), (22, 30), (24, 32), (26, 34)
    P = KG_PRM
    a.c("---- SSM K generation: powers")
    a(f"""
    v_lshl_add_u32 v{vWA}, v{L}, 3, s{sLBs}
    v_and_b32 v{T}, 31, v{L}
    v_mul_u32_u24 v{T}, {ROW}, v{T}
    v_lshrrev_b32 v{T+1}, 5, v{L}
    v_lshl_add_u32 v{T}, v{T+1}, 4, v{T}
    v_add_u32 v{vRA}, s{sLBs}, v{T}
    v_lshlrev_b32 v{vDT}, 16, v{P+4}
    v_lshlrev_b32 v{T}, 16, v{P}
    v_and_b32 v{T+1}, 0xffff0000, v{P}
    v_mul_f32 v{vDT}, {LOG2E:#x}, v{vDT}
    v_mul_f32 v{T}, {LOG2E:#x}, v{T}
    v_mul_f32 v{T+1}, {LOG2E:#x}, v{T+1}
    v_exp_f32 v{vDT}, v{vDT}
    v_exp_f32 v{T}, v{T}
    v_exp_f32 v{T+1}, v{T+1}
    v_lshlrev_b32 v{AIR}, 16, v{P+1}
    v_and_b32 v{AIR+1}, 0xffff0000, v{P+1}
    v_cvt_pk_bf16_f32 v{vDT}, v{vDT}, v{vDT}
    v_cvt_pk_bf16_f32 v{T}, v{T}, v{T+1}
    v_and_b32 v{vDT}, 0xffff0000, v{vDT}
    v_lshlrev_b32 v{ARL}, 16, v{T}
    v_and_b32 v{ARL+1}, 0xffff0000, v{T}
    v_mul_f32 v{ARL}, v{ARL}, v{vDT}
    v_mul_f32 v{ARL+1}, v{ARL+1}, v{vDT}
    v_mul_f32 v{AIR}, v{AIR}, v{vDT}
    v_mul_f32 v{AIR+1}, v{AIR+1}, v{vDT}
    v_mul_f32 v{ARL}, {f2u(-math.log2(math.e)):#x}, v{ARL}
    v_mul_f32 v{ARL+1}, {f2u(-math.log2(math.e)):#x}, v{ARL+1}
    v_mul_f32 v{AIR}, {INV2PI:#x}, v{AIR}
    v_mul_f32 v{AIR+1}, {INV2PI:#x}, v{AIR+1}
    """)
    for m in range(2):
        a(f"v_mul_f32 v{T+4+m}, {f2u(32.0):#x}, v{ARL+m}")
        a(f"v_mul_f32 v{T+6+m}, {f2u(32.0):#x}, v{AIR+m}")
    for m in range(2):
        a(f"v_exp_f32 v{T+m}, v{ARL+m}")
        a(f"v_fract_f32 v{T+2+m}, v{AIR+m}")
        a(f"v_exp_f32 v{T+4+m}, v{T+4+m}")
        a(f"v_fract_f32 v{T+6+m}, v{T+6+m}")
    for c in range(2):
        for m in range(2):
            a(f"v_cos_f32 v{RE[c]+m}, v{T+4*c+2+m}")
            a(f"v_sin_f32 v{IM[c]+m}, v{T+4*c+2+m}")
    a.c("scale for C: 2^(13 - exponent of max |C|)")
    a(f"""
    v_and_b32 v{CC}, 0x7fff7fff, v{P+2}
    v_and_b32 v{CC+1}, 0x7fff7fff, v{P+3}
    v_pk_max_i16 v{CC}, v{CC}, v{CC+1}
    """)
    for c in range(2):
        a(f"v_pk_mul_f32 {vr(RE[c],2)}, {vr(RE[c],2)}, {vr(T+4*c,2)}")
        a(f"v_pk_mul_f32 {vr(IM[c],2)}, {vr(IM[c],2)}, {vr(T+4*c,2)}")
    a(f"v_lshlrev_b32 v{CC+1}, 16, v{CC}")
    a(f"v_max_u32 v{CC}, v{CC}, v{CC+1}")

    def anchor(c, k):
        return [f"v_cvt_pk_f16_f32 v{AN+2*k+m}, v{RE[c]+m}, v{IM[c]+m}" for m in range(2)]

    def square(c):
        return [f"v_pk_mul_f32 {vr(T2[c],2)}, {vr(IM[c],2)}, {vr(IM[c],2)}",
                f"v_pk_add_f32 {vr(T3[c],2)}, {vr(RE[c],2)}, {vr(RE[c],2)}",
                f"v_pk_fma_f32 {vr(RE[c],2)}, {vr(RE[c],2)}, {vr(RE[c],2)}, {vr(T2[c],2)} neg_lo:[0,0,1] neg_hi:[0,0,1]",
                f"v_pk_mul_f32 {vr(IM[c],2)}, {vr(T3[c],2)}, {vr(IM[c],2)}"]

    red = [f"v_max_u32_dpp v{CC}, v{CC}, v{CC} row_ror:{n} row_mask:0xf bank_mask:0xf" for n in (8, 4, 2, 1)]
    for i in range(6):
        s0 = (anchor(0, i) + (square(0) if i < 4 else [])) if i < 5 else []
        s1 = anchor(1, 5 + i) + (square(1) if i < 5 else [])
        for k in range(max(len(s0), len(s1))):
            if k < len(s0): a(s0[k])
            if k < len(s1): a(s1[k])
        if i < 4:
            a(red[i])
    a(f"""
    v_readlane_b32 s42, v{CC}, 0
    v_readlane_b32 s43, v{CC}, 16
    v_readlane_b32 s44, v{CC}, 32
    v_readlane_b32 s45, v{CC}, 48
    v_lshlrev_b32 v{T}, 16, v{P+2}
    v_and_b32 v{T+1}, 0xffff0000, v{P+2}
    v_lshlrev_b32 v{T+2}, 16, v{P+3}
    v_and_b32 v{T+3}, 0xffff0000, v{P+3}
    s_max_u32 s42, s42, s43
    s_max_u32 s44, s44, s45
    s_max_u32 s42, s42, s44
    s_lshr_b32 s42, s42, 23
    s_max_u32 s42, s42, 14
    s_min_u32 s42, s42, 254
    s_sub_u32 s43, 267, s42
    s_lshl_b32 s43, s43, 23
    s_sub_u32 s42, s42, 13
    s_lshl_b32 s42, s42, 23
    v_mul_f32 v{T}, s43, v{T}
    v_mul_f32 v{T+1}, s43, v{T+1}
    v_mul_f32 v{T+2}, s43, v{T+2}
    v_mul_f32 v{T+3}, s43, v{T+3}
    v_cvt_pk_f16_f32 v{CC}, v{T}, -v{T+2}
    v_cvt_pk_f16_f32 v{CC+1}, v{T+1}, -v{T+3}
    v_add_f32 v{vDT}, v{vDT}, v{vDT}
    v_mul_f32 v{vDT}, s42, v{vDT}
    v_mov_b32 v{YR}, 0x3c00
    v_mov_b32 v{YR+1}, 0x3c00
    """)
    cnt = [0]

    def prod(d, w, k, conj):
        t = TM + 2 * (cnt[0] % 4)
        cnt[0] += 1
        neg = "neg_hi:[1,0,0]" if conj else "neg_lo:[1,0,0]"
        for m in range(2):
            a(f"v_pk_mul_f16 v{t+m}, v{w+m}, v{AN+2*k+m} op_sel:[0,0] op_sel_hi:[1,0]")
        for m in range(2):
            a(f"v_pk_fma_f16 v{d+m}, v{w+m}, v{AN+2*k+m}, v{t+m} op_sel:[1,1,0] op_sel_hi:[0,1,1] {neg}")

    Y = {0: YR}
    for b in range(5):
        Y[1 << b] = AN + 2 * (3 + b)
    X = {0: CC}
    plan = ((256, 0, 8), (512, 0, 9), (1024, 0, 10), (1, 0, 0), (2, 0, 1), (4, 0, 2), (8, 0, 3),
            (768, 256, 9), (3, 1, 1), (258, 256, 1), (1280, 256, 10), (1536, 512, 10), (1792, 768, 10),
            (5, 1, 2), (6, 2, 2), (7, 3, 2), (260, 256, 2), (262, 258, 2), (264, 256, 3),
            (516, 512, 2), (520, 512, 3), (772, 768, 2), (776, 768, 3),
            (1032, 1024, 3), (1288, 1280, 3), (1544, 1536, 3), (1800, 1792, 3))
    yplan = [(j + (1 << b), j, 3 + b) for b in range(1, 5) for j in range(1, 1 << b)]
    wr = lambda src, r: a(f"ds_write_b64 v{vWA}, {vr(src,2)} offset:{ROW*r}")
    early = 'yearly' in EXP
    done = [0, 1, 2, 4, 8, 16]
    for (jj, j, k) in yplan:
        Y[jj] = YR + 2 * jj
        prod(Y[jj], Y[j], k, False)
        if early:
            for _ in range(2):
                if done:
                    r = done.pop(0); wr(Y[r], r)
        done.append(jj)
    for n, (p, sp, k) in enumerate(plan):
        X[p] = XR + 2 * n
        prod(X[p], X[sp], k, True)
        for x in extra[3 * n:3 * n + 3]:
            a(x)
        if early and done:
            r = done.pop(0); wr(Y[r], r)
        if early and n == 4:
            a("s_waitcnt lgkmcnt(0)")
        if early and 4 <= n < 12:
            for ks in (2 * (n - 4), 2 * (n - 4) + 1):
                a(f"ds_read_b128 {vr(YR+4*ks,4)}, v{vRA} offset:{32*ks}")
    if early:
        a("s_waitcnt lgkmcnt(0)")
    return X, Y


def ssm_kgen_mat(a, X, Y):
    vDT, vWA, vRA, AN, CC, YR, XR, TM, ROW = (KG[k] for k in ("vDT", "vWA", "vRA", "AN", "CC", "YR", "XR", "TM", "ROW"))
    T = 8
    FB, FA, ACC = YR, XR, 160
    P = KG_PRM
    a.c("---- SSM K generation: stage, multiply, expand")
    if 'yearly' not in EXP:
        for r in range(32):
            a(f"ds_write_b64 v{vWA}, {vr(Y[r],2)} offset:{ROW*r}")
        a("s_waitcnt lgkmcnt(0)")
        for ks in range(16):
            a(f"ds_read_b128 {vr(FB+4*ks,4)}, v{vRA} offset:{32*ks}")
        a("s_waitcnt lgkmcnt(0)")
    rows = kg_rows()
    for p, rr in rows.items():
        for r in rr:
            a(f"ds_write_b64 v{vWA}, {vr(X[p],2)} offset:{ROW*r}")
    a(f"""
    v_and_b32 v{T}, 31, v{L}
    v_lshrrev_b32 v{T+1}, 5, v{L}
    v_lshlrev_b32 v{T+2}, 4, v{T}
    v_lshl_add_u32 v{T+2}, v{T+1}, 9, v{T+2}
    v_sub_u32 v{T+2}, {4080-3072}, v{T+2}
    v_add_u32 v{T+4}, s{sLBs}, v{T+2}
    s_mov_b64 s[42:43], 1
    v_lshlrev_b32 v{T+1}, 16, v{P+5}
    v_cndmask_b32 v{T+1}, 0, v{T+1}, s[42:43]
    v_mov_b32 v{T}, 0
    v_lshl_add_u32 v{T+5}, v{L}, 2, s{sLBs}
    v_lshl_add_u32 v{T+6}, v{L}, 4, s{sLBs}
    s_mov_b32 vcc_lo, 0xaaaaaaaa
    s_mov_b32 vcc_hi, 0xaaaaaaaa
    s_waitcnt lgkmcnt(0)
    """)
    for k in range(8):
        a(f"ds_read_b128 {vr(FA+4*k,4)}, v{vRA} offset:{32*k}")
    for ks in range(16):
        a(f"s_waitcnt lgkmcnt({min(7, 15-ks)})")
        c = "0" if ks == 0 else vr(ACC, 16)
        a(f"v_mfma_f32_32x32x16_f16 {vr(ACC,16)}, {vr(FA+4*(ks%8),4)}, {vr(FB+4*ks,4)}, {c}")
        if ks + 8 < 16:
            a(f"ds_read_b128 {vr(FA+4*(ks%8),4)}, v{vRA} offset:{32*(ks+8)}")
    a.c("u and its zero pad into LDS (staging area is free now)")
    a("s_waitcnt vmcnt(0)")
    for i in range(4):
        a(f"ds_write_b128 v{T+6}, {vr(U_R+4*i,4)} offset:{U_OFF+480+1024*i}")
    a(f"""
    ds_write_b32 v{T+5}, v{T} offset:{U_OFF}
    s_mov_b32 exec_hi, 0x00ffffff
    ds_write_b32 v{T+5}, v{T} offset:{U_OFF+256}
    s_mov_b64 exec, 0xff
    ds_write_b32 v{T+5}, v{T} offset:{KA_OFF+4096}
    s_mov_b64 exec, -1
    s_nop 1
    """)
    a.c("expand to the two reversed K copies")
    a(f"v_fma_f32 v{ACC}, v{ACC}, v{vDT}, v{T+1}")
    for i in range(1, 16):
        a(f"v_mul_f32 v{ACC+i}, v{ACC+i}, v{vDT}")
    a(f"v_cndmask_b32 v{T+2}, v{ACC+12}, v{ACC+13}, vcc")
    a(f"v_cndmask_b32 v{T+3}, v{ACC+14}, v{ACC+15}, vcc")
    pats = [[ACC + e for e in range(9)],
            [ACC + 9] * 3 + [ACC + 10] * 3 + [ACC + 11] * 3,
            [ACC + 12] * 4 + [T + 2] + [ACC + 13] * 4,
            [ACC + 14] * 4 + [T + 3] + [ACC + 15] * 4]
    for q, k in enumerate(pats):
        for cp in range(2):
            d = FB + (q * 2 + cp) * 4
            for i in range(4):
                hi = 7 - 2 * i + cp
                a(f"v_cvt_pk_bf16_f32 v{d+i}, v{k[hi]}, v{k[hi-1]}")
            a(f"ds_write_b128 v{T+4}, {vr(d,4)} offset:{(KB_OFF if cp else KA_OFF) + 3072 - 1024*q}")
    a(f"""
    v_cvt_pk_bf16_f32 v{T+1}, v{ACC}, v{T}
    v_cndmask_b32 v{T+1}, 0, v{T+1}, s[42:43]
    s_mov_b64 exec, 0xff
    ds_write_b32 v{T+5}, v{T+1} offset:{KB_OFF+4096}
    s_mov_b64 exec, -1
    """)


def ssm_load_u(a):
    a(f"""
    v_lshrrev_b32 v4, 4, v{L}
    v_lshlrev_b32 v4, 14, v4
    v_and_b32 v5, 15, v{L}
    v_lshl_add_u32 v4, v5, 4, v4
    s_lshl_b32 s{S_T}, s{sCG}, 18
    s_lshl2_add_u32 s{S_T+1}, s{sTBQ}, s{S_WAVE}
    s_lshl_b32 s{S_T+1}, s{S_T+1}, 8
    s_add_u32 s{S_T+2}, s{S_T}, s{S_T+1}
    s_add_u32 s{S_T}, s{S_T+2}, {WS_UT}
    """)
    for i in range(4):
        a(f"buffer_load_dwordx4 {vr(U_R+4*i,4)}, v4, {sr(S_WS,4)}, s{S_T} offen{SC}")
        if i < 3:
            a(f"s_add_u32 s{S_T}, s{S_T}, 65536")


CV_T, CV_UB, CV_KB, CV_ACC = 202, 206, 208, 4
CV_HI_A, CV_HI_B = 48, 64
CV_LO = (80, 112)


def ssm_conv_pre(a):
    T, UB, KBs, ACC = CV_T, CV_UB, CV_KB, CV_ACC
    a(f"""
    v_lshrrev_b32 v{T+3}, 4, v{L}
    v_and_b32 v{T+1}, 15, v{L}
    v_lshlrev_b32 v{UB}, 5, v{T+1}
    v_lshl_add_u32 v{UB}, v{T+3}, 4, v{UB}
    v_add_u32 v{UB}, s{sLBs}, v{UB}
    v_add_u32 v{UB}, {U_OFF+480-32-64}, v{UB}
    v_lshlrev_b32 v{T+3}, 4, v{T+3}
    v_lshlrev_b32 v{T+5}, 1, v{T+1}
    v_sub_u32 v{T+3}, v{T+3}, v{T+5}
    v_add_u32 v{T+3}, s{sLBs}, v{T+3}
    s_mov_b32 vcc_lo, 0xaaaaaaaa
    s_mov_b32 vcc_hi, 0xaaaaaaaa
    v_mov_b32 v{T+5}, {KB_OFF+4064-512-64}
    v_mov_b32 v{KBs}, {KA_OFF+4062-512-64}
    v_cndmask_b32 v{T+5}, v{T+5}, v{KBs}, vcc
    v_add_u32 v{KBs}, v{T+3}, v{T+5}
    v_subrev_u32 v{KBs+1}, 1024, v{KBs}
    v_subrev_u32 v{KBs+2}, 2048, v{KBs}
    v_subrev_u32 v{KBs+3}, 3072, v{KBs}
    """)


def ssm_conv(a):
    sC = 41
    T, UB, KBs, ACC = CV_T, CV_UB, CV_KB, CV_ACC
    a.c("---- SSM conv")
    for i in range(32):
        a(f"v_mov_b32 v{ACC+i}, 0")
    a(f"s_mov_b32 s{sC}, 4")
    a("s_waitcnt lgkmcnt(0)")

    def af(par, m):
        return CV_LO[par] + 4 * m if m < 4 else CV_HI_A + 4 * (m - 4)

    def bf(par, i):
        return CV_LO[par] + 16 + 4 * i if i < 4 else CV_HI_B + 4 * (i - 4)

    def rd(par, n):
        base = KBs + n // 2
        o = (128 if n % 2 == 0 else 0) + (16 if par == 0 else 0)
        return [f"ds_read2_b32 {vr(af(par,n),2)}, v{base} offset0:{o} offset1:{o+1}",
                f"ds_read2_b32 {vr(af(par,n)+2,2)}, v{base} offset0:{o+2} offset1:{o+3}",
                f"ds_read_b128 {vr(bf(par,n),4)}, v{UB} offset:{512*n + (64 if par == 0 else 0)}"]

    adv_lo = [f"v_subrev_u32 v{r}, 128, v{r}" for r in (UB, KBs, KBs + 1, KBs + 2, KBs + 3)]
    for n in range(4):
        for x in rd(0, n):
            a(x)
    loop = a.label("cv_loop")
    a(".p2align 3")
    a(f"{loop}:")
    for par in range(2):
        for n in range(8):
            a("s_waitcnt lgkmcnt(9)")
            pairs = [(n, i) for i in range(n + 1) if n + i <= 7] + [(m, n) for m in range(n) if m + n <= 7]
            nxt = rd(par, n + 4) if n < 4 else rd(1 - par, n - 4)
            if par == 1 and n == 4:
                nxt = adv_lo + nxt
            per = (len(nxt) + len(pairs) - 1) // len(pairs)
            for k, (m, i) in enumerate(pairs):
                acc = ACC + 4 * (m + i)
                a(f"v_mfma_f32_16x16x32_bf16 {vr(acc,4)}, {vr(af(par,m),4)}, {vr(bf(par,i),4)}, {vr(acc,4)}")
                for x in nxt[k * per:(k + 1) * per]:
                    a(x)
    a(f"""
    s_sub_u32 s{sC}, s{sC}, 1
    s_cmp_lg_u32 s{sC}, 0
    s_cbranch_scc1 {loop}
    """)
    a.c("store yT")
    a(f"""
    v_bfe_u32 v{T}, v{L}, 3, 1
    v_lshlrev_b32 v{T}, 14, v{T}
    v_and_b32 v{T+1}, 7, v{L}
    v_lshl_add_u32 v{T}, v{T+1}, 5, v{T}
    v_lshrrev_b32 v{T+1}, 4, v{L}
    v_lshl_add_u32 v{T}, v{T+1}, 3, v{T}
    s_add_u32 s{S_T}, s{S_T+2}, {WS_YT}
    s_waitcnt lgkmcnt(0)
    """)
    for i in range(8):
        a(f"v_cvt_pk_bf16_f32 v{CV_HI_A+2*i}, v{ACC+4*i}, v{ACC+4*i+1}")
        a(f"v_cvt_pk_bf16_f32 v{CV_HI_A+2*i+1}, v{ACC+4*i+2}, v{ACC+4*i+3}")
        a(f"buffer_store_dwordx2 {vr(CV_HI_A+2*i,2)}, v{T}, {sr(S_WS,4)}, s{S_T} offen{SC}")
        if i < 7:
            a(f"s_add_u32 s{S_T}, s{S_T}, 32768")


def kd(name):
    return f""".p2align 6
.amdhsa_kernel {name}
  .amdhsa_next_free_vgpr 256
  .amdhsa_next_free_sgpr 102
  .amdhsa_accum_offset 256
  .amdhsa_group_segment_fixed_size 0
  .amdhsa_kernarg_size 104
  .amdhsa_user_sgpr_count 2
  .amdhsa_user_sgpr_kernarg_segment_ptr 1
  .amdhsa_system_sgpr_workgroup_id_x 1
.end_amdhsa_kernel
"""


CODE_BYTES = 32 * 1024


def build():
    a = A()
    hdr = open(f"cdna_kernels/{NAME}.s.ref").read().split("; Override launch")[0]
    hdr += f"; @launch grid=({N_MAIN+N_SSM},1,1) block=(256,1,1) lds={LDS_BYTES}\n"
    a('.amdgcn_target "amdgcn-amd-amdhsa--gfx950"')
    a(".text")
    name = NAME + "_kernel"
    a(f".globl {name}")
    a(".p2align 8")
    a(f".type {name},@function")
    a(f"{name}:")
    ssm, end0 = a.label("ssm"), a.label("end")
    stamp_reset()
    stamp(a, False)
    a("v_lshrrev_b32 v2, 6, v0")
    a(f"v_and_b32 v{L}, 63, v0")
    if MAINFIRST:
        a(f"s_cmp_ge_u32 s2, {N_MAIN}")
        a(f"v_readfirstlane_b32 s{S_WAVE}, v2")
        a(f"s_cbranch_scc1 {ssm}")
    else:
        a(f"s_cmp_lt_u32 s2, {N_SSM}")
        a(f"v_readfirstlane_b32 s{S_WAVE}, v2")
        a(f"s_cbranch_scc1 {ssm}")
        a(f"s_sub_u32 s2, s2, {N_SSM}")
        a(f"s_cmp_ge_u32 s2, {N_MAIN}")
        a(f"s_cbranch_scc1 {end0}")
    for base, off in ((S_X, 0), (S_W, 8), (S_WS, 96), (S_WO, 16), (S_OUT, 80), (S_DBG, 88)):
        a(f"s_load_dwordx2 {sr(base,2)}, s[0:1], {off}")
    for base, n in ((S_X, 2621440), (S_W, 2457600), (S_WO, 819200), (S_OUT, 5242880), (S_DBG, 256), (S_WS, WS_SIZE)):
        srd(a, base, n)
    if 'mainprio' in EXP:
        a("s_setprio 3")
    idle, done = phase_g1(a)
    at_pre(a)
    a("s_waitcnt vmcnt(0)")
    wait_cleared(a, 2)
    a("s_barrier")
    nod, nof = a.label("no_rd"), a.label("no_fl")
    a(f"s_cmp_lg_u32 s{S_WAVE}, 0")
    a(f"s_cbranch_scc1 {nof}")
    set_flag(a, S_FG1, 2)
    a(f"{nof}:")
    stamp(a)
    a(f"s_cmp_lt_u32 s{S_WAVE}, 2")
    a(f"s_cbranch_scc1 {nod}")
    for g in wo_round([WO_R_D[0], WO_R_D[0], WO_R_D[0], WO_R_D[1]]):
        a(g)
    a(f"{nod}:")
    a("s_mov_b64 exec, s[34:35]")
    poll_flags(a, V_PG1, 2)
    stamp(a)
    slow, back = phase_at(a)
    for j in range(2):
        for x in op_wreads(j, WPRE + 20 * j):
            a(x)
    a(f"s_mul_i32 s40, s{sHP}, {F_SP}")
    a(f"s_add_u32 s40, s40, {F_O}")
    op_pre(a)
    a("s_waitcnt vmcnt(0) lgkmcnt(0)")
    a("s_barrier")
    stamp(a)
    w0, join = a.label("op_w0"), a.label("op_join")
    a(f"s_cmp_eq_u32 s{S_WAVE}, 0")
    a(f"s_cbranch_scc1 {w0}")
    for r in range(3):
        g3 = WO_LATE[3 * r:3 * r + 3]
        for g in wo_round([g3[0]] + g3):
            a(g)
    a(f"s_branch {join}")
    a(f"{w0}:")
    set_flag(a, S_FO, 2)
    spin(a, f"s_load_dwordx4 s[36:39], {sr(S_WS,2)}, s40 glc", all16(36), 1)
    a(f"{join}:")
    a("s_barrier")
    stamp(a)
    phase_op(a)
    stamp_flush(a)
    a(f"{end0}:")
    a("s_endpgm")
    a(f"{ssm}:")
    if MAINFIRST:
        a(f"s_sub_u32 s2, s2, {N_MAIN}")
        a(f"s_cmp_ge_u32 s2, {N_SSM}")
        a(f"s_cbranch_scc1 {end0}")
    stamp_reset(1)
    if 'ssmprio' in EXP:
        a("s_setprio 1")
    ssm_start(a, CODE_BYTES)
    if 'nossm' in EXP:
        a("s_endpgm")
    a(f"""
    s_add_u32 s36, s{sG}, {0 if MAINFIRST else N_MAIN-N_SSM}
    s_and_b32 s37, s36, 1
    s_lshl_b32 s37, s37, 3
    s_bfe_u32 s38, s36, 0x30003
    s_add_u32 s37, s37, s38
    s_bfe_u32 s38, s36, 0x20001
    s_lshl_b32 s38, s38, 2
    s_lshr_b32 s39, s36, 6
    s_add_u32 s38, s38, s39
    s_lshl4_add_u32 s37, s38, s37
    s_lshl_b32 s37, s37, 7
    s_add_u32 s57, s37, {F_G1}
    s_lshl_b32 s36, s36, 7
    s_add_u32 s56, s36, {F_H}
    s_lshl_b32 s52, s{S_WAVE}, 28
    s_or_b32 s52, s52, s56
    """)
    warm = ssm_u_warm(a)
    ssm_param_wait(a)
    stamp(a)
    X, Y = ssm_kgen_valu(a, warm)
    stamp(a)
    ssm_u_loads(a)
    ssm_t1(a)
    a(f"""
    v_mov_b32 v3, 0
    s_mov_b64 exec, 1
    buffer_store_dword v3, v3, {sr(S_WS,4)}, s52 offen sc1
    s_mov_b64 exec, -1
    """)
    ssm_conv_pre(a)
    j1 = a.label("ssm_j1")
    a("s_waitcnt vmcnt(0)")
    stamp(a)
    a("s_barrier")
    a(f"s_cmp_lg_u32 s{S_WAVE}, 0")
    a(f"s_cbranch_scc1 {j1}")
    a(f"v_mov_b32 v3, {DBG_CLR}")
    a(f"buffer_load_dword v2, v3, {sr(S_DBG,4)}, 0 offen sc1")
    a("s_waitcnt vmcnt(0)")
    wait_cleared(a, 2)
    set_flag(a, 63, 2)
    if 'nohint' not in EXP:
        a.c("scheduling hint: the main workgroup that normally shares this CU is about to leave its GEMM loop")
        spin(a, f"s_load_dword s3, {sr(S_WS,2)}, s56 glc\ns_load_dword s4, {sr(S_WS,2)}, s57 glc", "s_or_b32 s3, s3, s4\ns_cmp_eq_u32 s3, 1", 4)
    spin(a, f"s_load_dwordx4 s[44:47], {sr(S_WS,2)}, s62 glc", all16(44), 2)
    a(f"{j1}:")
    a("s_barrier")
    stamp(a)
    ssm_load_u(a)
    ssm_kgen_mat(a, X, Y)
    stamp(a)
    ssm_conv(a)
    stamp(a)
    j2 = a.label("ssm_j2")
    a("s_waitcnt vmcnt(0)")
    a("s_barrier")
    a(f"s_cmp_lg_u32 s{S_WAVE}, 0")
    a(f"s_cbranch_scc1 {j2}")
    set_flag(a, 59, 2)
    a(f"s_add_u32 s62, s62, {F_Y-F_U}")
    spin(a, f"s_load_dwordx4 s[44:47], {sr(S_WS,2)}, s62 glc", all16(44), 8)
    a(f"{j2}:")
    a("s_barrier")
    stamp(a)
    ssm_t2(a)
    if STAMPS:
        a(f"s_add_u32 s2, s2, {N_MAIN}")
    stamp_flush(a)
    a("s_endpgm")
    at_slow(a, slow, back)
    g1_idle(a, idle, done)
    a("code_end:")
    a(f".fill ({CODE_BYTES} - (code_end - {name})) / 4, 4, 0xbf810000")
    a('.section .rodata,"a"')
    return hdr + a.text() + kd(name)


if __name__ == "__main__":
    path = sys.argv[2] if len(sys.argv) > 2 else f"cdna_kernels/{NAME}.s"
    if len(sys.argv) > 3 and sys.argv[3] in ("stamps", "cyc"):
        STAMPS = True
        CYC = sys.argv[3] == "cyc"
    txt = build()
    open(path, "w").write(txt)
    print("wrote", path, len(txt), "bytes")
```

```python
import sys, math, struct, os, re
EXP = os.environ.get('EXP', '').split(',')

NAME = "concat_heads__mha_block__ssm_conv_s4d__prompt"

WS_Q = 0x000000
WS_K = 0x280000
WS_V = 0x500000
V_M, V_H, V_T, V_C = 2176, 4352, 8704, 557056
WS_O = 0x7C0000
WS_UT = 0xA40000
WS_YT = 0xCC0000
WS_FLAG = 0xF40000
WS_STAMP = 0xF80000
WS_SIZE = 0x1000000
F_SP = 128
F_G1, F_O, F_U, F_Y = WS_FLAG, WS_FLAG + 256 * 128, WS_FLAG + 272 * 128, WS_FLAG + 282 * 128
F_H = WS_FLAG + 320 * 128
DBG_CLR = 128

LDS_BYTES = 81920
N_MAIN, N_SSM = 256, 160
SC = " sc1"
MAINFIRST = 'mainfirst' in EXP
HINT_STAGE = int(os.environ.get('HINT_STAGE', '8'))
HINT_POS = int(os.environ.get('HINT_POS', '1'))
PRIO_STAGE = int(os.environ.get('PRIO_STAGE', '0'))


def f2u(x):
    return struct.unpack("<I", struct.pack("<f", x))[0]


class A:
    def __init__(self):
        self.L = []
        self.uid = 0

    def __call__(self, s):
        for line in s.strip("\n").split("\n"):
            line = line.strip()
            if not line:
                continue
            if line.endswith(":") or line.startswith("."):
                self.L.append(line)
            else:
                self.L.append("    " + line)

    def c(self, s):
        self.L.append("    ; " + s)

    def label(self, p="L"):
        self.uid += 1
        return f"{p}_{self.uid}"

    def text(self):
        return "\n".join(self.L) + "\n"


def vr(b, n=1):
    return f"v{b}" if n == 1 else f"v[{b}:{b+n-1}]"


def sr(b, n=1):
    return f"s{b}" if n == 1 else f"s[{b}:{b+n-1}]"


S_X, S_W, S_WS, S_WO, S_OUT, S_DBG = 8, 12, 16, 20, 24, 28
S_WAVE = 32
L = 1

STAMPS = False
CYC = False
_stamp_n = [0]
SLOTS = [84 + 2 * i for i in range(9)] + [64 + 2 * i for i in range(7)]


def stamp(a, wait=True, cyc=False):
    if not STAMPS:
        return
    i = _stamp_n[0]
    assert i < 16
    _stamp_n[0] += 1
    a(f"{'s_memtime' if (CYC or cyc) else 's_memrealtime'} s[{SLOTS[i]}:{SLOTS[i]+1}]")
    if wait:
        a("s_waitcnt lgkmcnt(0)")


def stamp_flush(a, main=False):
    if not STAMPS:
        return
    a("s_waitcnt vmcnt(0)")
    stamp(a)
    n = _stamp_n[0]
    if 'dbgstamps' in EXP and main:
        sk = a.label("dbgs")
        a(f"s_cmp_lg_u32 s{S_WAVE}, 0")
        a(f"s_cbranch_scc1 {sk}")
        a(f"s_cmp_ge_u32 s2, 192")
        a(f"s_cbranch_scc1 {sk}")
        a("v_mov_b32 v4, 0")
        a(f"s_not_b32 s3, s{SLOTS[0]}")
        a("v_writelane_b32 v4, s3, 1")
        for i in range(min(n, 15)):
            if i in (7, 9):
                continue
            a(f"v_writelane_b32 v4, s{SLOTS[i]}, {2 + i - (i > 7) - (i > 9)}")
        a(f"v_lshlrev_b32 v5, 2, v{L}")
        a("s_mov_b64 exec, 0xfffe")
        a(f"buffer_atomic_umax v4, v5, {sr(S_DBG,4)}, 0 offen sc1")
        a("s_mov_b64 exec, -1")
        a(f"{sk}:")
    a("s_mov_b64 exec, 1")
    a(f"s_lshl_b32 s36, s2, 2")
    a(f"s_add_u32 s36, s36, s{S_WAVE}")
    a(f"s_lshl_b32 s36, s36, 6")
    a(f"s_add_u32 s36, s36, {WS_STAMP}")
    a("v_mov_b32 v2, 0")
    for i in range(16):
        a(f"v_mov_b32 v{8+i}, {'s%d' % SLOTS[i] if i < n else '0'}")
    for i in range(4):
        a(f"buffer_store_dwordx4 v[{8+4*i}:{11+4*i}], v2, {sr(S_WS,4)}, s36 offen offset:{16*i}")


def stamp_reset(n=0):
    _stamp_n[0] = n


def srd(a, base, nbytes):
    a(f"s_mov_b32 s{base+2}, {nbytes}")
    a(f"s_mov_b32 s{base+3}, 0x20000")


def spin(a, loads, test, sleep=2):
    top, ok = a.label("spin_top"), a.label("spin_ok")
    a("s_mov_b32 s58, 0x40000")
    a(f"{top}:")
    a(loads)
    a("s_waitcnt lgkmcnt(0)")
    a(test)
    a(f"s_cbranch_scc1 {ok}")
    a("s_sub_u32 s58, s58, 1")
    a(f"s_cbranch_scc1 {ok}")
    if sleep:
        a(f"s_sleep {sleep}")
    a(f"s_branch {top}")
    a(f"{ok}:")


def wait_cleared(a, vt):
    top, ok = a.label("clr_top"), a.label("clr_ok")
    a("s_mov_b32 s58, 0x40000")
    a(f"{top}:")
    a(f"v_cmp_eq_u32 vcc, 0, v{vt}")
    a(f"s_cbranch_vccz {ok}")
    a("s_sub_u32 s58, s58, 1")
    a(f"s_cbranch_scc1 {ok}")
    a("s_sleep 8")
    a(f"buffer_load_dword v{vt}, v{vt+1}, {sr(S_DBG,4)}, 0 offen sc1")
    a("s_waitcnt vmcnt(0)")
    a(f"s_branch {top}")
    a(f"{ok}:")


def poll_flags(a, vaddr, vt, sleep=1):
    top, ok = a.label("poll_top"), a.label("poll_ok")
    a("s_mov_b32 s58, 0x40000")
    a(f"{top}:")
    a(f"buffer_load_dword v{vt}, v{vaddr}, {sr(S_WS,4)}, 0 offen sc1")
    a("s_waitcnt vmcnt(0)")
    a(f"v_cmp_ne_u32 vcc, 1, v{vt}")
    a(f"s_cbranch_vccz {ok}")
    a("s_mov_b64 exec, vcc")
    a("s_sub_u32 s58, s58, 1")
    a(f"s_cbranch_scc1 {ok}")
    a(f"s_sleep {sleep}")
    a(f"s_branch {top}")
    a(f"{ok}:")
    a("s_mov_b64 exec, -1")


def set_flag(a, soff, vt, srd_=None):
    a(f"v_mov_b32 v{vt}, 1")
    a(f"v_mov_b32 v{vt+1}, 0")
    a("s_mov_b64 exec, 1")
    a(f"buffer_store_byte v{vt}, v{vt+1}, {sr(srd_ or S_WS,4)}, s{soff} offen sc1")
    a("s_mov_b64 exec, -1")


def all16(b):
    return f"""s_and_b64 s[{b}:{b+1}], s[{b}:{b+1}], s[{b+2}:{b+3}]
    s_and_b32 s{b}, s{b}, s{b+1}
    s_cmp_eq_u32 s{b}, 0x01010101"""


WO_V = 241
OP_WA = 246
AT_VK1, AT_VK2, AT_VV, AT_VQ2 = 250, 251, 252, 253
V_PG1 = 254
sHP, sRB_A, sKB, sKN, sVO, sT0A, sT1A, sO1, sO2, sF1, sF2, sBLK, sKH, sIT, sKN2 = 44, 45, 47, 48, 49, 50, 51, 52, 53, 54, 55, 56, 57, 46, 59
S_FG1, S_FO = 62, 63

WO_R_A = [(0, 0), (1, 1), (2, 2)]
WO_R_B = [(3, 3), (4, 4), (5, 5), (6, 6)]
WO_R_C = [(7, 7), (8, 8)]
WO_R_D = [(9, 9), (10, 10)]
WO_LATE = [(11 + i, s) for i, s in enumerate([11, 12, 13, 14, 15, 0, 1, 2, 3])]
WO_SLOT = dict(WO_R_A + WO_R_B + WO_R_C + WO_R_D + WO_LATE)
CMB_OFF = 11 * 5120


def wo_round(grp):
    grp = list(grp)
    while len(grp) < 4:
        grp.append(grp[-1])
    ck = sum(k << (8 * w) for w, (k, _) in enumerate(grp))
    cs = sum(s << (8 * w) for w, (_, s) in enumerate(grp))
    out = [f"""s_lshl_b32 s3, s{S_WAVE}, 3
    s_lshr_b32 s4, {ck:#x}, s3
    s_and_b32 s4, s4, 0xff
    s_mul_i32 s4, s4, 40960
    s_lshr_b32 s5, {cs:#x}, s3
    s_and_b32 s5, s5, 0xff
    s_mul_i32 s5, s5, 5120"""]
    for q in range(5):
        out.append(f"s_add_u32 m0, s5, {q*1024}\ns_nop 0\nbuffer_load_dwordx4 v{WO_V+q}, {sr(S_WO,4)}, s4 offen lds")
    return out


def main_setup(a):
    T = 32
    a.c("---- Wo DMA voffsets; cb = (wg>>3)&7")
    a("s_bfe_u32 s3, s2, 0x30003")
    a("s_mul_i32 s3, s3, 160")
    for q in range(5):
        a(f"""
        v_add_u32 v{T}, {64*q}, v{L}
        v_mul_u32_u24 v{T+1}, 205, v{T}
        v_lshrrev_b32 v{T+1}, 11, v{T+1}
        v_mul_u32_u24 v{T+1}, 1120, v{T+1}
        v_lshl_add_u32 v{T+1}, v{T}, 4, v{T+1}
        v_add_u32 v{WO_V+q}, s3, v{T+1}
        """)
    a.c("---- Wo fragment LDS addresses")
    a(f"""
    v_lshrrev_b32 v{T}, 4, v{L}
    v_bfe_u32 v{T+1}, v{L}, 2, 2
    v_lshl_add_u32 v{T}, v{T}, 3, v{T+1}
    v_mul_u32_u24 v{T}, 160, v{T}
    v_and_b32 v{T+1}, 3, v{L}
    s_lshr_b32 s{sKH}, s{S_WAVE}, 1
    s_mul_i32 s3, s{sKH}, 5120
    v_add_u32 v{T}, s3, v{T}
    v_lshl_add_u32 v{OP_WA}, v{T+1}, 4, v{T}
    v_lshl_add_u32 v{OP_WA+1}, v{T+1}, 3, v{T}
    v_add_u32 v{OP_WA+2}, 40960, v{OP_WA}
    v_add_u32 v{OP_WA+3}, 40960, v{OP_WA+1}
    """)
    a.c("---- attention mapping  hp = 2*xcd + (idx>>4), rb = idx & 15")
    a(f"""
    s_and_b32 s3, s2, 7
    s_lshl_b32 s{sHP}, s3, 1
    s_lshr_b32 s4, s2, 7
    s_add_u32 s{sHP}, s{sHP}, s4
    s_bfe_u32 s{sRB_A}, s2, 0x40003
    s_and_b32 s3, s{S_WAVE}, 1
    s_mul_i32 s4, s{sHP}, 5
    s_mul_i32 s{sO1}, s3, 3
    s_add_u32 s{sO1}, s{sO1}, s4
    s_add_u32 s{sO2}, s4, 2
    s_lshl_b32 s{sF1}, s{sO1}, 3
    s_lshl_b32 s{sF2}, s{sO2}, 3
    s_lshl_b32 s4, s3, 2
    s_add_u32 s{sF2}, s{sF2}, s4
    s_lshl_b32 s{sO1}, s{sO1}, 15
    s_lshl_b32 s{sO2}, s{sO2}, 15
    s_lshl_b32 s4, s3, 3
    s_add_u32 s{sO2}, s{sO2}, s4
    v_and_b32 v{T}, 31, v{L}
    v_lshrrev_b32 v{T+1}, 5, v{L}
    v_lshlrev_b32 v{T+2}, 15, v{T+1}
    v_lshl_add_u32 v{T+2}, v{T}, 4, v{T+2}
    v_add_u32 v{AT_VK1}, s{sO1}, v{T+2}
    v_lshl_add_u32 v{AT_VK2}, v{T}, 4, s{sO2}
    v_lshl_add_u32 v{AT_VQ2}, v{L}, 4, s{sO2}
    """)
    a.c("V lane address: row rho -> feature; rows 20,24,28 -> ones; other pad rows out of range (zeros)")
    a(f"""
    v_bfe_u32 v{T+2}, v{L}, 2, 1
    v_lshlrev_b32 v{T+2}, 3, v{T+2}
    v_bfe_u32 v{T+3}, v{L}, 3, 1
    v_lshl_add_u32 v{T+2}, v{T+3}, 2, v{T+2}
    v_add_u32 v{T+2}, s{sF1}, v{T+2}
    v_mov_b32 v{T+3}, s{sF2}
    s_mov_b32 vcc_lo, 0x0000ffff
    s_mov_b32 vcc_hi, 0x0000ffff
    v_cndmask_b32 v{T+2}, v{T+3}, v{T+2}, vcc
    v_and_b32 v{T+3}, 3, v{L}
    v_add_u32 v{T+2}, v{T+2}, v{T+3}
    v_lshrrev_b32 v{T+3}, 7, v{T+2}
    v_and_b32 v{T+2}, 127, v{T+2}
    v_mov_b32 v{T+4}, 128
    s_mov_b32 vcc_lo, 0x000fffff
    s_mov_b32 vcc_hi, 0x000fffff
    v_cndmask_b32 v{T+2}, v{T+4}, v{T+2}, vcc
    s_mov_b32 s3, {V_C}
    v_mul_lo_u32 v{T+3}, v{T+3}, s3
    v_lshl_add_u32 v{T+2}, v{T+2}, 4, v{T+3}
    v_mul_u32_u24 v{T+1}, {V_H}, v{T+1}
    v_add_u32 v{T+2}, v{T+2}, v{T+1}
    v_add_u32 v{T+2}, {WS_V}, v{T+2}
    s_mov_b32 vcc_lo, 0xeee00000
    s_mov_b32 vcc_hi, 0xeee00000
    v_mov_b32 v{T+4}, 0x40000000
    v_cndmask_b32 v{AT_VV}, v{T+2}, v{T+4}, vcc
    s_and_b32 s{sBLK}, s{sRB_A}, 7
    """)
    a.c("poll addresses: lanes<32: grp=l>>3 (Ka,Kb,Va,Vb), rb = 8kh+(l&7); lanes>=32: Q tile (l&1), own rb")
    a(f"""
    s_mul_i32 s3, s{sHP}, 40
    s_add_u32 s4, s3, 39
    s_lshr_b32 s3, s3, 7
    s_lshr_b32 s4, s4, 7
    s_cmp_eq_u32 s3, s4
    s_cselect_b32 s34, 0x00ff00ff, -1
    s_cselect_b32 s35, 1, 3
    v_mov_b32 v{T}, s3
    v_mov_b32 v{T+1}, s4
    s_mov_b32 vcc_lo, 0xff00ff00
    s_mov_b32 vcc_hi, 0xaaaaaaaa
    v_cndmask_b32 v{T}, v{T}, v{T+1}, vcc
    v_bfe_u32 v{T+1}, v{L}, 4, 1
    v_mad_u32_u24 v{T+1}, v{T+1}, 5, 5
    v_and_b32 v{T+2}, 7, v{L}
    s_lshl_b32 s3, s{sKH}, 3
    v_add_u32 v{T+2}, s3, v{T+2}
    v_mov_b32 v{T+3}, s{sRB_A}
    s_mov_b32 vcc_lo, -1
    s_mov_b32 vcc_hi, 0
    v_cndmask_b32 v{T+1}, 0, v{T+1}, vcc
    v_cndmask_b32 v{T+2}, v{T+3}, v{T+2}, vcc
    v_add_u32 v{T}, v{T}, v{T+1}
    v_lshlrev_b32 v{T}, 11, v{T}
    v_lshl_add_u32 v{T}, v{T+2}, 7, v{T}
    v_add_u32 v{V_PG1}, {F_G1}, v{T}
    s_mul_i32 s{S_FO}, s{sRB_A}, {F_SP}
    s_add_u32 s{S_FO}, s{S_FO}, s{sHP}
    s_add_u32 s{S_FO}, s{S_FO}, {F_O}
    """)


def phase_g1(a):
    sRB, sCJ, sX, sWo, sT0, sT1, sWM, sWN, sLB = 36, 37, 38, 39, 40, 41, 42, 43, 33
    done, idle = a.label("g1_done"), a.label("g1_idle")
    VX, VW = 4, 8
    XA, XB = 12, 16
    WA, WB = 20, 22
    T = 24
    ACC = 48
    FR = 112
    a.c("---- G1: tile mapping")
    a(f"""
    s_and_b32 s{sRB}, s2, 1
    s_lshl_b32 s{sRB}, s{sRB}, 3
    s_bfe_u32 s{sX}, s2, 0x30003
    s_add_u32 s{sRB}, s{sRB}, s{sX}
    s_bfe_u32 s{sCJ}, s2, 0x20001
    s_lshl_b32 s{sCJ}, s{sCJ}, 2
    s_lshr_b32 s{sWo}, s2, 6
    s_add_u32 s{sCJ}, s{sCJ}, s{sWo}
    s_mul_i32 s{sX}, s{sX}, 5
    s_mul_i32 s{sWo}, s{sWo}, 10
    s_add_u32 s{sX}, s{sX}, s{sWo}
    s_lshr_b32 s{sX}, s{sX}, 2
    s_cmp_ge_u32 s{sX}, 10
    s_cselect_b32 s{sT0}, 10, 0
    s_sub_u32 s{sX}, s{sX}, s{sT0}
    s_mul_i32 s{sWo}, s{sX}, 245760
    s_lshl_b32 s{sX}, s{sX}, 7
    s_lshl_b32 s{sLB}, s{S_WAVE}, 10
    v_lshrrev_b32 v{T}, 3, v0
    s_lshl_b32 s{sT0}, s{sRB}, 7
    v_add_u32 v{T}, s{sT0}, v{T}
    v_mul_u32_u24 v{T}, 1280, v{T}
    v_lshrrev_b32 v{T+1}, 4, v0
    v_xor_b32 v{T+2}, v{T+1}, v0
    v_and_b32 v{T+2}, 7, v{T+2}
    v_lshl_add_u32 v{VX}, v{T+2}, 4, v{T}
    v_add_u32 v{VX+1}, 40960, v{VX}
    v_add_u32 v{VX+2}, 81920, v{VX}
    v_add_u32 v{VX+3}, 122880, v{VX}
    v_mul_u32_u24 v{T}, 3840, v{T+1}
    v_lshlrev_b32 v{T+2}, 2, v{T+1}
    v_xor_b32 v{T+2}, v{T+2}, v0
    v_and_b32 v{T+2}, 15, v{T+2}
    v_lshl_add_u32 v{T}, v{T+2}, 4, v{T}
    s_lshl_b32 s{sT0}, s{sCJ}, 8
    v_add_u32 v{VW}, s{sT0}, v{T}
    v_add_u32 v{VW+1}, 61440, v{VW}
    v_add_u32 v{VW+2}, 122880, v{VW}
    v_add_u32 v{VW+3}, 184320, v{VW}
    s_cmp_eq_u32 s{sCJ}, 15
    s_waitcnt lgkmcnt(0)
    s_cbranch_scc1 {idle}
    """)
    if 'nomain' in EXP:
        a("s_endpgm")

    def issue_item(n):
        out = []
        slot = n % 5
        isx = (n % 2 == 0)
        for i in range(4):
            g = f"s_add_u32 m0, s{sLB}, {slot*16384 + i*4096}\ns_nop 0\n"
            if isx:
                g += f"buffer_load_dwordx4 v{VX+i}, {sr(S_X,4)}, s{sX} offen lds"
            else:
                g += f"buffer_load_dwordx4 v{VW+i}, {sr(S_W,4)}, s{sWo} offen lds"
            out.append(g)
        if isx:
            out.append(f"s_add_u32 s{sX}, s{sX}, 128\ns_cmp_eq_u32 s{sX}, 1280\ns_cselect_b32 s{sX}, 0, s{sX}")
        else:
            out.append(f"s_add_u32 s{sWo}, s{sWo}, 245760\ns_cmp_eq_u32 s{sWo}, 2457600\ns_cselect_b32 s{sWo}, 0, s{sWo}")
        return out

    for n in range(2):
        for g in issue_item(n):
            a(g)
    a.c("x fragment addresses")
    a(f"""
    s_and_b32 s{sWM}, s{S_WAVE}, 1
    s_lshr_b32 s{sWN}, s{S_WAVE}, 1
    v_and_b32 v{T}, 31, v{L}
    v_lshrrev_b32 v{T+1}, 5, v{L}
    v_bfe_u32 v{T+2}, v{L}, 1, 3
    v_xor_b32 v{T+2}, v{T+2}, v{T+1}
    s_lshl_b32 s{sT0}, s{sWM}, 13
    v_lshl_add_u32 v{T}, v{T}, 7, s{sT0}
    """)
    for ks in range(4):
        a(f"v_xor_b32 v{T+3}, {2*ks}, v{T+2}")
        a(f"v_lshl_add_u32 v{XA+ks}, v{T+3}, 4, v{T}")
        a(f"v_add_u32 v{XB+ks}, 0x10000, v{XA+ks}")
    for g in issue_item(2):
        a(g)
    a.c("W fragment addresses")
    a(f"""
    v_bfe_u32 v{T}, v{L}, 2, 2
    v_lshrrev_b32 v{T+1}, 5, v{L}
    v_lshl_add_u32 v{T+1}, v{T+1}, 3, v{T}
    v_lshlrev_b32 v{T+1}, 8, v{T+1}
    v_bfe_u32 v{T+2}, v{L}, 4, 1
    v_lshl_add_u32 v{T+1}, v{T+2}, 5, v{T+1}
    v_and_b32 v{T+2}, 3, v{L}
    v_and_b32 v{T+3}, 1, v{L}
    v_bfe_u32 v{T+4}, v{L}, 1, 1
    v_lshl_add_u32 v{T+3}, v{T+3}, 1, v{T+4}
    s_cmp_ge_u32 s{sCJ}, 10
    s_cselect_b64 vcc, -1, 0
    v_cndmask_b32 v{T+2}, v{T+3}, v{T+2}, vcc
    v_lshl_add_u32 v{T+1}, v{T+2}, 3, v{T+1}
    s_lshl_b32 s{sT0}, s{sWN}, 1
    """)
    for fn in range(2):
        a(f"s_add_u32 s{sT1}, s{sT0}, {fn}")
        a(f"v_xor_b32 v{T+3}, s{sT1}, v{T}")
        a(f"v_lshl_add_u32 v{WA+fn}, v{T+3}, 6, v{T+1}")
        a(f"v_add_u32 v{WB+fn}, 0x10000, v{WA+fn}")
    main_setup(a)
    a(f"""
    s_lshl_b32 s3, s2, 7
    s_add_u32 s3, s3, {F_H}
    s_lshl_b32 s4, s{S_WAVE}, 28
    s_or_b32 s3, s3, s4
    v_mov_b32 v{T+8}, s3
    v_mov_b32 v{T+9}, 1
    """)
    for g in issue_item(3):
        a(g)

    def xf(s, ks, tm):
        return FR + 64 * (s % 2) + ks * 16 + tm * 4

    def wf(s, ks, fn):
        return FR + 64 * (s % 2) + ks * 16 + 8 + fn * 4

    def reads(s):
        out = []
        sx, sw = (2 * s) % 5, (2 * s + 1) % 5
        for ks in range(4):
            for tm in range(2):
                base, off = (XA, sx * 16384) if sx < 4 else (XB, 0)
                out.append(f"ds_read_b128 {vr(xf(s,ks,tm),4)}, v{base+ks} offset:{off + tm*4096}")
            for fn in range(2):
                base, off = (WA, sw * 16384) if sw < 4 else (WB, 0)
                for e in range(2):
                    out.append(f"ds_read_b64_tr_b16 {vr(wf(s,ks,fn)+2*e,2)}, v{base+fn} offset:{off + ks*4096 + e*1024}")
        return out

    def mfmas(s, isv):
        out = []
        for ks in range(4):
            for fn in range(2):
                for tm in range(2):
                    acc = ACC + (fn * 2 + tm) * 16
                    A_, B_ = (xf(s, ks, tm), wf(s, ks, fn)) if isv else (wf(s, ks, fn), xf(s, ks, tm))
                    c = "0" if (s == 0 and ks == 0) else vr(acc, 16)
                    out.append(f"v_mfma_f32_32x32x16_bf16 {vr(acc,16)}, {vr(A_,4)}, {vr(B_,4)}, {c}")
        return out

    def mainloop(isv):
        n0 = _stamp_n[0]
        for s in range(10):
            if s <= 8:
                allowed = 8
            else:
                allowed = 10
            if s - 1 == HINT_STAGE:
                allowed += 1
            a(f"s_waitcnt vmcnt({allowed})")
            a("s_barrier")
            if s == PRIO_STAGE:
                a("s_setprio 3")
            if s in (0, 5):
                stamp(a)
            rd = reads(s)
            if s <= 7:
                g1, g2 = issue_item(2 * s + 4), issue_item(2 * s + 5)
            elif s == 8:
                g1, g2 = wo_round(WO_R_A), wo_round(WO_R_B)
            else:
                g1, g2 = wo_round(WO_R_C), []
            m = mfmas(s - 1, isv) if s > 0 else [""] * 16
            if 'g1nomfma' in EXP:
                m = [""] * 16
            if 'g1nord' in EXP:
                rd = [""] * 24
            if 'g1nodma' in EXP:
                g1 = [x.replace("buffer_load", ";buffer_load") for x in g1]
                g2 = [x.replace("buffer_load", ";buffer_load") for x in g2]
            fill = [[] for _ in range(16)]
            for i in range(8):
                fill[i] += rd[3 * i:3 * i + 3]
            p1 = [1, 3, 5, 7, 8, 9] if len(g1) == 5 else [0, 2, 4, 6, 8, 9]
            for k, g in enumerate(g1):
                fill[p1[k]].append(g)
            if g2:
                fill[9].append("s_waitcnt lgkmcnt(0)\ns_barrier")
            p2 = [10, 11, 13, 14, 15, 15] if len(g2) == 5 else [10, 11, 12, 13, 14, 15]
            for k, g in enumerate(g2):
                fill[p2[k]].append(g)
            if not g2:
                fill[15].append("s_waitcnt lgkmcnt(0)")
            if s == HINT_STAGE:
                fill[HINT_POS].append(f"""s_mov_b64 exec, 1
                buffer_store_dword v{T+9}, v{T+8}, {sr(S_WS,4)}, 0 offen sc1
                s_mov_b64 exec, -1""")
            for i in range(16):
                a(m[i])
                for x in fill[i]:
                    a(x)
        for x in mfmas(9, isv):
            a(x)
        stamp(a)
        if not isv:
            stamp_reset(n0)

    lv = a.label("g1_v")
    a(f"s_cmp_ge_u32 s{sCJ}, 10")
    a(f"s_cbranch_scc1 {lv}")
    qs = (20 ** -0.5) * math.log2(math.e)
    a(f"""
    s_cmp_lt_u32 s{sCJ}, 5
    s_cselect_b32 s6, {f2u(qs):#x}, 1.0
    s_mov_b32 s7, s6
    s_lshl_b32 s{sT1}, s{sCJ}, 4
    s_lshl_b32 s{sT0}, s{sWN}, 3
    s_add_u32 s{sT1}, s{sT1}, s{sT0}
    s_lshl_b32 s{sT1}, s{sT1}, 15
    s_lshl_b32 s{sT0}, s{sRB}, 11
    s_add_u32 s{sT1}, s{sT1}, s{sT0}
    s_lshl_b32 s{sT0}, s{sWM}, 10
    s_add_u32 s{sT1}, s{sT1}, s{sT0}
    v_and_b32 v{T}, 31, v{L}
    v_lshrrev_b32 v{T+1}, 5, v{L}
    v_lshlrev_b32 v{T+1}, 15, v{T+1}
    v_lshl_add_u32 v{T}, v{T}, 4, v{T+1}
    """)
    mainloop(False)
    a.c("Q/K epilogue")
    a("s_nop 8")
    assert WS_K == WS_Q + 80 * 32768 and WS_Q == 0
    for fn in range(2):
        for tm in range(2):
            acc = ACC + (fn * 2 + tm) * 16
            for half in range(2):
                d = FR + ((fn * 2 + tm) * 2 + half) * 4
                for i in range(4):
                    a(f"v_pk_mul_f32 {vr(acc+half*8+2*i,2)}, {vr(acc+half*8+2*i,2)}, s[6:7]")
                for i in range(4):
                    a(f"v_cvt_pk_bf16_f32 v{d+i}, v{acc+half*8+2*i}, v{acc+half*8+2*i+1}")
                a(f"s_add_u32 s{sX}, s{sT1}, {(fn*4+half*2)*32768}")
                a(f"buffer_store_dwordx4 {vr(d,4)}, v{T}, {sr(S_WS,4)}, s{sX} offen offset:{tm*512}{SC}")
    a(f"s_branch {done}")
    a(f"{lv}:")
    a(f"""
    s_sub_u32 s{sT1}, s{sCJ}, 10
    s_mul_i32 s{sT1}, s{sT1}, {V_C}
    s_mul_i32 s{sT0}, s{sRB}, {4*V_T}
    s_add_u32 s{sT1}, s{sT1}, s{sT0}
    s_add_u32 s{sT1}, s{sT1}, {WS_V}
    s_mul_i32 s6, s{S_WAVE}, {V_T}
    s_add_u32 s6, s6, s{sT1}
    s_mul_i32 s{sT0}, s{sWM}, {2*V_T}
    s_add_u32 s{sT1}, s{sT1}, s{sT0}
    s_lshl_b32 s{sT0}, s{sWN}, 10
    s_add_u32 s{sT1}, s{sT1}, s{sT0}
    s_add_u32 s{sT0}, s{sT1}, {V_T}
    v_and_b32 v{T}, 31, v{L}
    v_lshrrev_b32 v{T+1}, 5, v{L}
    v_mul_u32_u24 v{T+1}, {V_H}, v{T+1}
    v_lshl_add_u32 v{T}, v{T}, 4, v{T+1}
    v_lshrrev_b32 v{T+2}, 3, v{L}
    v_mul_u32_u24 v{T+2}, {V_M}, v{T+2}
    v_and_b32 v{T+1}, 7, v{L}
    v_lshl_add_u32 v{T+2}, v{T+1}, 4, v{T+2}
    v_mov_b32 v{T+4}, 0x3f803f80
    v_mov_b32 v{T+5}, 0x3f803f80
    v_mov_b32 v{T+6}, 0x3f803f80
    v_mov_b32 v{T+7}, 0x3f803f80
    """)
    mainloop(True)
    a.c("V epilogue; ones rows: wave w writes the 4 rows of token tile w (lanes 0..31)")
    a(f"""
    s_mov_b32 exec_hi, 0
    buffer_store_dwordx4 {vr(T+4,4)}, v{T+2}, {sr(S_WS,4)}, s6 offen offset:2048{SC}
    s_mov_b32 exec_hi, -1
    s_nop 5
    """)
    for fn in range(2):
        for tm in range(2):
            acc = ACC + (fn * 2 + tm) * 16
            for m in range(2):
                d = FR + ((fn * 2 + tm) * 2 + m) * 4
                for i in range(4):
                    a(f"v_cvt_pk_bf16_f32 v{d+i}, v{acc+m*8+2*i}, v{acc+m*8+2*i+1}")
                a(f"buffer_store_dwordx4 {vr(d,4)}, v{T}, {sr(S_WS,4)}, s{sT0 if tm else sT1} offen offset:{m*V_M + fn*512}{SC}")
    a(f"{done}:")
    a(f"""
    s_setprio 3
    v_mov_b32 v3, {DBG_CLR}
    buffer_load_dword v2, v3, {sr(S_DBG,4)}, 0 offen sc1
    s_lshl4_add_u32 s{S_FG1}, s{sCJ}, s{sRB}
    s_lshl_b32 s{S_FG1}, s{S_FG1}, 7
    s_add_u32 s{S_FG1}, s{S_FG1}, {F_G1}
    """)
    return idle, done


def g1_idle(a, idle, done):
    sRB = 36
    a(f"{idle}:")
    noclr = a.label("noclr")
    a.c("the 16 tile-less workgroups clear the flag lines (20 each); the last one to finish sets the cleared word")
    a(f"""
    s_cmp_lg_u32 s{S_WAVE}, 0
    s_cbranch_scc1 {noclr}
    s_mul_i32 s3, s{sRB}, {20*128}
    s_add_u32 s3, s3, {WS_FLAG}
    v_lshlrev_b32 v10, 7, v{L}
    v_mov_b32 v4, 0
    v_mov_b32 v5, 0
    v_mov_b32 v6, 0
    v_mov_b32 v7, 0
    s_mov_b64 exec, 0xfffff
    buffer_store_dwordx4 v[4:7], v10, {sr(S_WS,4)}, s3 offen sc1
    v_mov_b32 v8, 1
    v_mov_b32 v9, 1
    s_mov_b64 exec, 1
    s_waitcnt vmcnt(0)
    buffer_atomic_add v8, v4, {sr(S_DBG,4)}, 0 offen sc0 sc1
    s_waitcnt vmcnt(0)
    v_cmp_eq_u32 vcc, 15, v8
    s_cbranch_vccz {noclr}x
    buffer_store_dword v9, v4, {sr(S_DBG,4)}, 0 offen offset:{DBG_CLR} sc1
    {noclr}x:
    s_mov_b64 exec, -1
    {noclr}:
    """)
    a("s_barrier")
    if 'nomain' in EXP:
        a("s_endpgm")
    main_setup(a)
    for r in (WO_R_A, WO_R_B, WO_R_C):
        for g in wo_round(r):
            a(g)
    a("s_waitcnt vmcnt(0)")
    a(f"s_branch {done}")


AT_O, AT_SA, AT_SB, AT_P = 16, 80, 112, 144
AT_Q1, AT_Q2 = 160, 176
AT_KV = 180
WPRE = 80


def kv(b):
    base = AT_KV + 14 * (b % 4)
    return dict(K1=base, V0=base + 4, V1=base + 8, K2=base + 12)


def ldK(b, sreg, i):
    r = kv(b)
    return [f"buffer_load_dwordx4 {vr(r['K1'],4)}, v{AT_VK1}, {sr(S_WS,4)}, s{sreg} offen offset:{512*i}{SC}",
            f"buffer_load_dwordx2 {vr(r['K2'],2)}, v{AT_VK2}, {sr(S_WS,4)}, s{sreg} offen offset:{512*i}{SC}"]


def ldV(b):
    r = kv(b)
    return [f"buffer_load_dwordx4 {vr(r['V0'],4)}, v{AT_VV}, {sr(S_WS,4)}, s{sVO} offen{SC}",
            f"buffer_load_dwordx4 {vr(r['V1'],4)}, v{AT_VV}, {sr(S_WS,4)}, s{sVO} offen offset:{V_M}{SC}"]


def qk2b(buf, b, pair):
    return f"v_mfma_f32_32x32x4_2b_bf16 {vr(buf,32)}, {vr(kv(b)['K2'],2)}, {vr(AT_Q2+2*pair,2)}, 0"


def qk1(buf, b, pair, t):
    d = buf + 16 * t
    return f"v_mfma_f32_32x32x16_bf16 {vr(d,16)}, {vr(kv(b)['K1'],4)}, {vr(AT_Q1+4*(2*pair+t),4)}, {vr(d,16)}"


def pv(b, m, qt, pi):
    o = AT_O + 16 * qt
    return f"v_mfma_f32_32x32x16_bf16 {vr(o,16)}, {vr(kv(b)['V%d' % m],4)}, {vr(AT_P+4*pi,4)}, {vr(o,16)}"


def at_pre(a):
    for i in range(64):
        a(f"v_mov_b32 v{AT_O+i}, 0")
    for i in range(4):
        a(f"v_mov_b32 v{AT_P+12+i}, 0")
        a(f"v_mov_b32 v{kv(3)['V1']+i}, 0")
    a(f"""
    s_lshl3_add_u32 s{sT0A}, s{sKH}, s{sBLK}
    s_lshl_b32 s{sKB}, s{sT0A}, 11
    s_add_u32 s{sKB}, s{sKB}, {WS_K}
    s_mul_i32 s{sVO}, s{sT0A}, {4*V_T}
    s_add_u32 s{sBLK}, s{sBLK}, 1
    s_and_b32 s{sBLK}, s{sBLK}, 7
    s_lshl3_add_u32 s{sT0A}, s{sKH}, s{sBLK}
    s_lshl_b32 s{sKN}, s{sT0A}, 11
    s_add_u32 s{sKN}, s{sKN}, {WS_K}
    s_mov_b32 s{sIT}, 8
    s_lshl_b32 s60, s{sRB_A}, 11
    s_lshl_b32 s3, s{sKH}, 10
    s_add_u32 s60, s60, s3
    s_xor_b32 s61, s60, 1024
    """)


def phase_at(a):
    T = 4
    a.c("---- AT: Q loads and first K/V tiles")
    for x in ldK(0, sKB, 0):
        a(x)
    for p in range(2):
        a(f"buffer_load_dwordx2 {vr(AT_Q2+2*p,2)}, v{AT_VQ2}, {sr(S_WS,4)}, s{60+p} offen{SC}")
        for t in range(2):
            a(f"buffer_load_dwordx4 {vr(AT_Q1+4*(2*p+t),4)}, v{AT_VK1}, {sr(S_WS,4)}, s{60+p} offen offset:{512*t}{SC}")
    for x in ldV(0):
        a(x)
    a(f"s_add_u32 s{sVO}, s{sVO}, {V_T}")
    for x in ldK(1, sKB, 1):
        a(x)
    for x in ldV(1):
        a(x)
    a(f"s_add_u32 s{sVO}, s{sVO}, {V_T}")
    for x in ldK(2, sKB, 2):
        a(x)
    a("s_waitcnt vmcnt(11)")
    stamp(a)
    stamp(a, cyc=True)
    a(qk2b(AT_SA, 0, 0))
    a("s_nop 15")
    a("s_nop 1")
    a(qk1(AT_SA, 0, 0, 0))
    a(qk1(AT_SA, 0, 0, 1))
    a("s_nop 9")
    a("s_waitcnt vmcnt(8)")

    loop = a.label("at_loop")
    a(".p2align 6")
    a(f"{loop}:")
    for st in range(4):
        for pair in range(2):
            X, Y = (AT_SA, AT_SB) if pair == 0 else (AT_SB, AT_SA)
            nb, npair = (st, 1) if pair == 0 else (st + 1, 0)
            pb, pqt = (st - 1, 3) if pair == 0 else (st, 1)
            if pair == 0:
                lv = ldV(st + 2)
                if st + 2 == 3:
                    adv = f"s_mul_i32 s{sVO}, s{sT0A}, {4*V_T}"
                else:
                    adv = f"s_add_u32 s{sVO}, s{sVO}, {V_T}"
                free = [None, "s_waitcnt vmcnt(6)", lv[0], lv[1], adv, None, "s_waitcnt vmcnt(6)"]
            else:
                lk = ldK(st + 3, sKB, st + 3) if st + 3 < 4 else ldK(st + 3, sKN, st + 3 - 4)
                free = [lk[0], lk[1]] + [None] * 5
                if st == 2:
                    free[2:] = [f"s_add_u32 s{sBLK}, s{sBLK}, 1", f"s_and_b32 s{sBLK}, s{sBLK}, 7",
                                f"s_lshl3_add_u32 s{sT0A}, s{sKH}, s{sBLK}", f"s_lshl_b32 s{sKN2}, s{sT0A}, 11",
                                f"s_add_u32 s{sKN2}, s{sKN2}, {WS_K}"]
                if st == 3:
                    free[2:] = [f"s_mov_b32 s{sKB}, s{sKN}", f"s_mov_b32 s{sKN}, s{sKN2}", f"s_sub_u32 s{sIT}, s{sIT}, 1",
                                None, f"s_cmp_lg_u32 s{sIT}, 0"]
            M = [qk2b(Y, nb, npair), pv(pb, 1, pqt, 3), pv(st, 0, 2 * pair, 0), qk1(Y, nb, npair, 0),
                 pv(st, 1, 2 * pair, 1), qk1(Y, nb, npair, 1), pv(st, 0, 2 * pair + 1, 2)]
            pos = {0: 0, 7: 1, 14: 2, 19: 3, 26: 4, 31: 5, 39: 6}
            V = []
            for g in range(4):
                base = X + 8 * g
                V += [f"v_exp_f32 v{base+i}, v{base+i}" for i in range(8)]
                V += [f"v_cvt_pk_bf16_f32 v{AT_P+4*g+i}, v{base+2*i}, v{base+2*i+1}" for i in range(4)]
            for i, x in enumerate(V):
                if i in pos:
                    k = pos[i]
                    a(M[k])
                    if free[k]:
                        a(free[k])
                a(x)
    a(f"s_cbranch_scc1 {loop}")
    a(f"s_mul_i32 s3, s{S_WAVE}, 6144")
    a(f"s_add_u32 s3, s3, {CMB_OFF}")
    a(pv(3, 1, 3, 3))
    stamp(a)
    stamp(a, cyc=True)
    a.c("---- AT: combine the two key halves: keep local tiles 0,1; send local tiles 2,3")
    a(f"v_lshl_add_u32 v{T}, v{L}, 4, s3")
    for g in range(3):
        a(f"ds_write_b128 v{T}, {vr(AT_O+32+4*g,4)} offset:{g*1024}")
    a(f"""
    s_xor_b32 s3, s{S_WAVE}, 2
    s_mul_i32 s3, s3, 6144
    s_add_u32 s3, s3, {CMB_OFF}
    v_lshl_add_u32 v{T+1}, v{L}, 4, s3
    v_or_b32 v{T+2}, 32, v{L}
    v_lshl_add_u32 v{T+2}, v{T+2}, 4, s3
    s_add_u32 s60, s60, {WS_O}
    s_nop 0
    """)
    for g in range(3):
        a(f"ds_write_b128 v{T}, {vr(AT_O+48+4*g,4)} offset:{(3+g)*1024}")
    a("s_waitcnt lgkmcnt(0)")
    a("s_barrier")
    R = AT_O + 32
    for t in range(2):
        a(f"ds_read_b32 v{R+16*t+12}, v{T+2} offset:{(t*3+2)*1024}")
        for g in range(3):
            a(f"ds_read_b128 {vr(R+16*t+4*g,4)}, v{T+1} offset:{(t*3+g)*1024}")
    for t in range(2):
        o = AT_O + 16 * t
        a(f"s_waitcnt lgkmcnt({4-4*t})")
        a(f"v_add_f32 v{o+12}, v{o+12}, v{R+16*t+12}")
        for i in range(6):
            a(f"v_pk_add_f32 {vr(o+2*i,2)}, {vr(o+2*i,2)}, {vr(R+16*t+2*i,2)}")
    a.c("run-time guard of the un-shifted exponentials: row sums well inside the fp32 range and finite accumulators")
    slow, back = a.label("at_slow"), a.label("at_back")
    o0, o1 = AT_O, AT_O + 16
    a(f"v_pk_add_f32 {vr(T,2)}, {vr(o0,2)}, {vr(o0+2,2)}")
    a(f"v_pk_add_f32 {vr(T+2,2)}, {vr(o1,2)}, {vr(o1+2,2)}")
    for i in (4, 6, 8, 10):
        a(f"v_pk_add_f32 {vr(T,2)}, {vr(T,2)}, {vr(o0+i,2)}")
        a(f"v_pk_add_f32 {vr(T+2,2)}, {vr(T+2,2)}, {vr(o1+i,2)}")
    a(f"v_min_f32 v{T+4}, v{o0+12}, v{o1+12}")
    a(f"v_pk_add_f32 {vr(T,2)}, {vr(T,2)}, {vr(T+2,2)}")
    a(f"v_add_f32 v{T+5}, v{o0+12}, v{o1+12}")
    a(f"v_cmp_nlt_f32 vcc, {f2u(2.0**-40):#x}, v{T+4}")
    a(f"v_add_f32 v{T}, v{T}, v{T+1}")
    a(f"s_mov_b64 s[4:5], vcc")
    a(f"v_fma_f32 v{T+5}, v{T}, 0, v{T+5}")
    a(f"v_cmp_ngt_f32 vcc, {f2u(2.0**40):#x}, v{T+5}")
    a(f"s_or_b64 s[4:5], s[4:5], vcc")
    a(f"s_cbranch_scc1 {slow}")
    a(f"{back}:")
    for t in range(2):
        o = AT_O + 16 * t
        a(f"v_rcp_f32 v{o+14}, v{o+12}")
    for t in range(2):
        o = AT_O + 16 * t
        for i in range(6):
            a(f"v_pk_mul_f32 {vr(o+2*i,2)}, {vr(o+2*i,2)}, {vr(o+14,2)} op_sel_hi:[1,0]")
        for i in range(6):
            a(f"v_cvt_pk_bf16_f32 v{R+16*t+i}, v{o+2*i}, v{o+2*i+1}")
        a(f"buffer_store_dwordx4 {vr(R+16*t,4)}, v{AT_VK1}, {sr(S_WS,4)}, s60 offen offset:{512*t}{SC}")
    a("s_mov_b32 exec_hi, 0")
    for t in range(2):
        a(f"buffer_store_dwordx2 {vr(R+16*t+4,2)}, v{AT_VK2}, {sr(S_WS,4)}, s60 offen offset:{512*t}{SC}")
    a("s_mov_b32 exec_hi, -1")
    return slow, back


def at_slow(a, slow, back):
    M0, M1, T = 4, 5, 6
    a(f"{slow}:")
    a("s_waitcnt vmcnt(0)")
    a(f"v_mov_b32 v{M0}, 0xff800000")
    a(f"v_mov_b32 v{M1}, 0xff800000")
    for ps in range(2):
        lp = a.label("slow_loop")
        a(f"s_mov_b32 s{sKB}, {WS_K}")
        a(f"s_mov_b32 s{sVO}, 0")
        a(f"s_mov_b32 s{sIT}, 64")
        a(f"{lp}:")
        for x in ldK(0, sKB, 0):
            a(x)
        if ps == 1:
            for x in ldV(0):
                a(x)
        a("s_waitcnt vmcnt(0)")
        a(qk2b(AT_SA, 0, 0))
        a("s_nop 15")
        a("s_nop 1")
        a(qk1(AT_SA, 0, 0, 0))
        a(qk1(AT_SA, 0, 0, 1))
        a("s_nop 11")
        if ps == 0:
            for t, m in ((0, M0), (1, M1)):
                for i in range(8):
                    a(f"v_max3_f32 v{m}, v{m}, v{AT_SA+16*t+2*i}, v{AT_SA+16*t+2*i+1}")
        else:
            for t, m in ((0, M0), (1, M1)):
                for i in range(16):
                    a(f"v_sub_f32 v{AT_SA+16*t+i}, v{AT_SA+16*t+i}, v{m}")
            for i in range(32):
                a(f"v_exp_f32 v{AT_SA+i}, v{AT_SA+i}")
            for i in range(16):
                a(f"v_cvt_pk_bf16_f32 v{AT_P+i}, v{AT_SA+2*i}, v{AT_SA+2*i+1}")
            a("s_nop 1")
            a(pv(0, 0, 0, 0)); a(pv(0, 1, 0, 1)); a(pv(0, 0, 1, 2)); a(pv(0, 1, 1, 3))
        a(f"""
        s_add_u32 s{sKB}, s{sKB}, 512
        s_add_u32 s{sVO}, s{sVO}, {V_T}
        s_sub_u32 s{sIT}, s{sIT}, 1
        s_cmp_lg_u32 s{sIT}, 0
        s_cbranch_scc1 {lp}
        """)
        if ps == 0:
            for m in (M0, M1):
                a(f"""
                v_mov_b32 v{T}, v{m}
                v_mov_b32 v{T+1}, v{m}
                s_nop 1
                v_permlane32_swap_b32 v{T}, v{T+1}
                s_nop 1
                v_max_f32 v{m}, v{T}, v{T+1}
                """)
            for i in range(32):
                a(f"v_mov_b32 v{AT_O+i}, 0")
    a("s_nop 11")
    a(f"s_branch {back}")


OP_ACC = 200
OP_OF = 120
OP_WF = 16


def op_wreads(j, dst):
    s0, s1 = WO_SLOT[2 * j], WO_SLOT[2 * j + 1]
    assert s1 == s0 + 1, (j, s0, s1)
    off = s0 * 5120
    hi = 0
    if off >= 40960:
        off -= 40960
        hi = 2
    out = []
    for ct in range(5):
        for e in range(2):
            if ct < 4:
                areg, o = OP_WA + hi, (ct >> 1) * 64 + (ct & 1) * 8
            else:
                areg, o = OP_WA + 1 + hi, 128
            out.append(f"ds_read_b64_tr_b16 {vr(dst+4*ct+2*e,2)}, v{areg} offset:{off + o + e*640}")
    return out


def op_pre(a):
    T = 4
    a.c("---- OP: mapping tb64 = 4*xcd + (wg>>6), cb = (wg>>3)&7")
    a(f"""
    s_and_b32 s3, s2, 7
    s_lshl_b32 s44, s3, 2
    s_lshr_b32 s3, s2, 6
    s_add_u32 s44, s44, s3
    s_and_b32 s47, s{S_WAVE}, 1
    s_lshl_b32 s45, s44, 10
    s_lshl_b32 s3, s47, 9
    s_add_u32 s45, s45, s3
    s_lshl_b32 s3, s{sKH}, 17
    s_add_u32 s45, s45, s3
    s_add_u32 s45, s45, {WS_O}
    v_and_b32 v{T}, 15, v{L}
    v_lshrrev_b32 v{T+1}, 4, v{L}
    v_lshlrev_b32 v{T+2}, 15, v{T+1}
    v_lshl_add_u32 v{T+2}, v{T}, 4, v{T+2}
    s_lshl_b32 s3, s{sKH}, 8
    v_add_u32 v{T+4}, s3, v{T+2}
    v_xor_b32 v{T+5}, 256, v{T+4}
    s_lshl_b32 s46, s44, 6
    s_lshl_b32 s3, s47, 5
    s_add_u32 s46, s46, s3
    s_lshl_b32 s3, s{sKH}, 4
    s_add_u32 s46, s46, s3
    s_mul_i32 s46, s46, 2560
    s_bfe_u32 s3, s2, 0x30003
    s_mul_i32 s3, s3, 160
    s_add_u32 s46, s46, s3
    v_mul_u32_u24 v{T}, 2560, v{T}
    v_lshl_add_u32 v{T+7}, v{T+1}, 3, v{T}
    v_lshl_add_u32 v{T+6}, v{T+1}, 4, v{T}
    s_mul_i32 s3, s{S_WAVE}, 5120
    s_add_u32 s3, s3, {4*5120}
    v_lshl_add_u32 v{T+8}, v{L}, 4, s3
    s_xor_b32 s3, s{S_WAVE}, 2
    s_mul_i32 s3, s3, 5120
    s_add_u32 s3, s3, {4*5120}
    v_lshl_add_u32 v{T+9}, v{L}, 4, s3
    """)


def phase_op(a):
    T = 4
    for j in range(10):
        for t in range(2):
            a(f"buffer_load_dwordx4 {vr(OP_OF+(2*j+t)*4,4)}, v{T+4+t}, {sr(S_WS,4)}, s45 offen{SC}")
        if j < 9:
            a(f"s_add_u32 s45, s45, {8*32768}")
    stamp(a)

    def wreg(j):
        return WPRE + 20 * j if j < 2 else OP_WF + 20 * (j % 2)

    for x in op_wreads(2, wreg(2)):
        a(x)
    for j in range(10):
        nxt = op_wreads(j + 1, wreg(j + 1)) if (j + 1 >= 3 and j + 1 < 10) else []
        if j >= 2:
            a(f"s_waitcnt vmcnt({18-2*j}) lgkmcnt(0)")
        else:
            a(f"s_waitcnt vmcnt({18-2*j})")
        if j == 4:
            a("s_barrier")
        k = 0
        for ct in range(5):
            for t in range(2):
                acc = OP_ACC + (ct * 2 + t) * 4
                c = "0" if j == 0 else vr(acc, 4)
                a(f"v_mfma_f32_16x16x32_bf16 {vr(acc,4)}, {vr(wreg(j)+4*ct,4)}, {vr(OP_OF+(2*j+t)*4,4)}, {c}")
                if k < len(nxt):
                    a(nxt[k]); k += 1
    stamp(a)
    a.c("reduce the two k halves through slots 4..7: keep local token tile 0, send local tile 1")
    a("s_nop 3")
    for ct in range(5):
        a(f"ds_write_b128 v{T+8}, {vr(OP_ACC+ct*8+4,4)} offset:{ct*1024}")
    a("s_waitcnt lgkmcnt(0)")
    a("s_barrier")
    for ct in range(5):
        a(f"ds_read_b128 {vr(OP_ACC+ct*8+4,4)}, v{T+9} offset:{ct*1024}")
    D = OP_OF
    for ct in range(5):
        a(f"s_waitcnt lgkmcnt({4-ct})")
        for i in range(2):
            a(f"v_pk_add_f32 {vr(OP_ACC+ct*8+2*i,2)}, {vr(OP_ACC+ct*8+2*i,2)}, {vr(OP_ACC+ct*8+4+2*i,2)}")
        for i in range(2):
            a(f"v_cvt_pk_bf16_f32 v{D+2*ct+i}, v{OP_ACC+ct*8+2*i}, v{OP_ACC+ct*8+2*i+1}")
        if ct == 1:
            a(f"buffer_store_dwordx4 {vr(D,4)}, v{T+6}, {sr(S_OUT,4)}, s46 offen")
        if ct == 3:
            a(f"buffer_store_dwordx4 {vr(D+4,4)}, v{T+6}, {sr(S_OUT,4)}, s46 offen offset:64")
    a(f"buffer_store_dwordx2 {vr(D+8,2)}, v{T+7}, {sr(S_OUT,4)}, s46 offen offset:128")


S_U, S_LA, S_AI, S_CR, S_CI, S_LD, S_DS = 8, 12, 64, 68, 72, 76, 80
sG, sCG, sTBQ = 33, 34, 35
S_T = 36
SSM_WL = 20480
KA_OFF, KB_OFF, U_OFF = 0, 4160, 8320
T1_OFF = 16384
KG_PRM = 224
T1_R = 232
sLBs = 40


def ssm_start(a, code_bytes):
    first = ((S_LA, 32, 163840), (S_AI, 40, 163840), (S_CR, 48, 163840), (S_CI, 56, 163840))
    rest = ((S_U, 24, 2621440), (S_OUT, 80, 5242880), (S_DBG, 88, 256), (S_WS, 96, WS_SIZE))
    for base, off, n in first + ((S_LD, 64, 0), (S_DS, 72, 0)) + rest:
        a(f"s_load_dwordx2 {sr(base,2)}, s[0:1], {off}")
    a.c("pull the kernel's code into this XCD's L2 (512 B per wave)")
    a(f"""
    s_getpc_b64 s[6:7]
    pf_anchor:
    s_sub_u32 s6, s6, pf_anchor-{NAME}_kernel
    s_subb_u32 s7, s7, 0
    s_lshr_b32 s3, s2, 3
    s_lshl2_add_u32 s3, s3, s{S_WAVE}
    s_min_u32 s3, s3, {code_bytes//512 - 1}
    s_lshl_b32 s3, s3, 9
    v_lshl_add_u32 v7, v{L}, 3, s3
    global_load_dwordx2 v[248:249], v7, s[6:7]
    s_mov_b32 s{sG}, s2
    s_lshl2_add_u32 s4, s{sG}, s{S_WAVE}
    s_lshl_b32 s5, s4, 8
    s_lshr_b32 s4, s4, 1
    s_lshl_b32 s4, s4, 2
    v_lshlrev_b32 v2, 2, v{L}
    """)
    for base, off, n in first:
        srd(a, base, n)
    a(f"""
    s_waitcnt lgkmcnt(0)
    buffer_load_dword v{KG_PRM}, v2, {sr(S_LA,4)}, s5 offen
    buffer_load_dword v{KG_PRM+1}, v2, {sr(S_AI,4)}, s5 offen
    buffer_load_dword v{KG_PRM+2}, v2, {sr(S_CR,4)}, s5 offen
    buffer_load_dword v{KG_PRM+3}, v2, {sr(S_CI,4)}, s5 offen
    s_load_dword s54, {sr(S_LD,2)}, s4
    s_load_dword s55, {sr(S_DS,2)}, s4
    s_lshr_b32 s{sCG}, s{sG}, 4
    s_and_b32 s{sTBQ}, s{sG}, 15
    """)
    for base, off, n in rest:
        srd(a, base, n)
    a(f"""
    s_mov_b32 s60, 0x05040100
    s_mov_b32 s61, 0x07060302
    s_mul_i32 s{sLBs}, s{S_WAVE}, {SSM_WL}
    s_mul_i32 s62, s{sCG}, {F_SP}
    s_add_u32 s62, s62, {F_U}
    s_add_u32 s63, s62, s{sTBQ}
    s_add_u32 s59, s63, {F_Y-F_U}
    """)


def ssm_param_wait(a):
    a(f"""
    s_and_b32 s3, s{S_WAVE}, 1
    s_lshl_b32 s3, s3, 4
    s_waitcnt lgkmcnt(0)
    s_lshr_b32 s54, s54, s3
    s_lshr_b32 s55, s55, s3
    v_mov_b32 v{KG_PRM+4}, s54
    v_mov_b32 v{KG_PRM+5}, s55
    s_waitcnt vmcnt(0)
    """)


def ssm_u_warm(a):
    a(f"""
    s_lshl_b32 s{S_T}, s{sTBQ}, 7
    s_lshl_b32 s{S_T+1}, s{S_WAVE}, 5
    s_add_u32 s{S_T}, s{S_T}, s{S_T+1}
    s_mul_i32 s{S_T}, s{S_T}, 1280
    s_lshl_b32 s{S_T+1}, s{sCG}, 7
    s_add_u32 s53, s{S_T}, s{S_T+1}
    s_add_u32 s6, s{S_U}, s53
    s_addc_u32 s7, s{S_U+1}, 0
    """)
    out = []
    if 'warm' in EXP or 'warm1' in EXP:
        for r in range(32):
            for h in range(1 if 'warm1' in EXP else 2):
                out.append(f"s_load_dword s{48+(r%4)}, s[6:7], {1280*r + 64*h}")
    return out


def ssm_u_loads(a):
    a(f"""
    v_lshrrev_b32 v4, 3, v{L}
    v_and_b32 v5, 7, v{L}
    v_mul_u32_u24 v6, 5120, v4
    v_lshl_add_u32 v6, v5, 4, v6
    s_waitcnt lgkmcnt(0)
    """)
    for j in range(4):
        if 't1nold' not in EXP:
            a(f"buffer_load_dwordx4 {vr(T1_R+4*j,4)}, v6, {sr(S_U,4)}, s53 offen offset:{1280*j}")


def ssm_t1(a):
    T, R, P = 4, T1_R, 202
    a.c("---- SSM T1")
    a(f"""
    v_lshrrev_b32 v{T}, 3, v{L}
    v_and_b32 v{T+1}, 7, v{L}
    v_lshrrev_b32 v{T+3}, 4, v0
    v_xor_b32 v{T+3}, v{T+3}, v{T+1}
    v_lshlrev_b32 v{T+3}, 4, v{T+3}
    v_lshl_add_u32 v{T+3}, v{T+1}, 11, v{T+3}
    v_and_b32 v{T+4}, 1, v{T}
    v_lshl_add_u32 v{T+3}, v{T+4}, 3, v{T+3}
    s_lshl_b32 s{S_T+1}, s{S_WAVE}, 12
    v_lshl_add_u32 v{T}, v{L}, 4, s{S_T+1}
    s_lshl_b32 s{S_T}, s{sG}, 14
    s_add_u32 s{S_T}, s{S_T}, s{S_T+1}
    s_add_u32 s{S_T}, s{S_T}, {WS_UT}
    s_lshl_b32 s{S_T+1}, s{S_WAVE}, 1
    v_xor_b32 v{T+1}, s{S_T+1}, v{L}
    v_lshlrev_b32 v{T+1}, 4, v{T+1}
    v_xor_b32 v{T+2}, 16, v{T+1}
    s_waitcnt vmcnt(0)
    """)
    for d in range(4):
        for p in range(2):
            e = 2 * d + p
            a(f"v_perm_b32 v{P+2*e}, v{R+4+d}, v{R+d}, s{60+p}")
            a(f"v_perm_b32 v{P+2*e+1}, v{R+12+d}, v{R+8+d}, s{60+p}")
            a(f"ds_write_b64 v{T+3}, {vr(P+2*e,2)} offset:{256*e}")
    a("s_waitcnt lgkmcnt(0)")
    a("s_barrier")
    for i in range(4):
        a(f"ds_read_b128 {vr(R+4*i,4)}, v{T} offset:{1024*i}")
    for i in range(4):
        a(f"s_waitcnt lgkmcnt({3-i})")
        if 't1nost' not in EXP:
            a(f"buffer_store_dwordx4 {vr(R+4*i,4)}, v{T+1+(i>>1)}, {sr(S_WS,4)}, s{S_T} offen offset:{1024*i}{'' if 't1plain' in EXP else SC}")


def ssm_t2(a):
    T, R, P = 4, 16, 32
    a.c("---- SSM T2")
    a(f"""
    v_lshrrev_b32 v{T}, 4, v{L}
    v_and_b32 v{T+1}, 15, v{L}
    v_lshlrev_b32 v{T+2}, 10, v{T}
    v_lshl_add_u32 v{T+2}, v{T+1}, 4, v{T+2}
    s_lshl_b32 s{S_T}, s{sG}, 14
    s_lshl_b32 s{S_T+1}, s{S_WAVE}, 12
    s_add_u32 s{S_T}, s{S_T}, s{S_T+1}
    s_add_u32 s{S_T}, s{S_T}, {WS_YT}
    """)
    for j in range(4):
        a(f"buffer_load_dwordx4 {vr(R+4*j,4)}, v{T+2}, {sr(S_WS,4)}, s{S_T} offen offset:{256*j}{SC}")
    a(f"""
    v_lshrrev_b32 v{T+3}, 5, v0
    v_xor_b32 v{T+3}, v{T+3}, v{T+1}
    v_and_b32 v{T+3}, 7, v{T+3}
    v_lshlrev_b32 v{T+3}, 4, v{T+3}
    v_lshl_add_u32 v{T+3}, v{T+1}, 10, v{T+3}
    v_and_b32 v{T+4}, 1, v{T}
    v_lshl_add_u32 v{T+3}, v{T+4}, 3, v{T+3}
    v_lshlrev_b32 v{T}, 4, v{L}
    v_add_u32 v{T}, s{S_T+1}, v{T}
    s_lshl_b32 s{S_T}, s{sTBQ}, 7
    s_lshl_b32 s{S_T+1}, s{S_WAVE}, 5
    s_add_u32 s{S_T}, s{S_T}, s{S_T+1}
    s_mul_i32 s{S_T}, s{S_T}, 2560
    s_lshl_b32 s{S_T+1}, s{sCG}, 7
    s_add_u32 s{S_T}, s{S_T}, s{S_T+1}
    s_add_u32 s{S_T}, s{S_T}, 1280
    v_lshrrev_b32 v{T+1}, 3, v{L}
    v_mul_u32_u24 v{T+1}, 2560, v{T+1}
    s_lshl_b32 s{S_T+1}, s{S_WAVE}, 2
    v_xor_b32 v{T+2}, s{S_T+1}, v{L}
    v_and_b32 v{T+2}, 7, v{T+2}
    """)
    for i in range(4):
        a(f"v_xor_b32 v{T+4}, {i}, v{T+2}")
        a(f"v_lshl_add_u32 v{T+5+i}, v{T+4}, 4, v{T+1}")
    a("s_waitcnt vmcnt(0)")
    for d in range(4):
        for p in range(2):
            e = 2 * d + p
            a(f"v_perm_b32 v{P+2*e}, v{R+4+d}, v{R+d}, s{60+p}")
            a(f"v_perm_b32 v{P+2*e+1}, v{R+12+d}, v{R+8+d}, s{60+p}")
            a(f"ds_write_b64 v{T+3}, {vr(P+2*e,2)} offset:{128*e}")
    a("s_waitcnt lgkmcnt(0)")
    a("s_barrier")
    for i in range(4):
        a(f"ds_read_b128 {vr(R+4*i,4)}, v{T} offset:{1024*i}")
    for i in range(4):
        a(f"s_waitcnt lgkmcnt({3-i})")
        a(f"buffer_store_dwordx4 {vr(R+4*i,4)}, v{T+5+i}, {sr(S_OUT,4)}, s{S_T} offen")
        if i < 3:
            a(f"s_add_u32 s{S_T}, s{S_T}, {8*2560}")


KG = dict(vDT=218, vWA=219, vRA=220, AN=36, CC=58, YR=60, XR=124, TM=178, ROW=528)
U_R = 186


def xrow(h, r):
    return 8 * (r // 4) + 4 * h + (r % 4)


def kg_rows():
    rows = {}
    for r in range(9):
        rows.setdefault(r, []).append(xrow(0, r))
        rows.setdefault(256 + [0, 0, 2, 4, 4, 4, 6, 8, 8][r], []).append(xrow(1, r))
    for h in range(2):
        for i, off in enumerate((0, 4, 8)):
            rows.setdefault(512 + 256 * h + off, []).append(xrow(h, 9 + i))
        for i, off in enumerate((0, 8)):
            rows.setdefault(1024 + 256 * h + off, []).append(xrow(h, 12 + i))
            rows.setdefault(1536 + 256 * h + off, []).append(xrow(h, 14 + i))
    return rows


def ssm_kgen_valu(a, extra):
    LOG2E = f2u(math.log2(math.e))
    INV2PI = f2u(1.0 / (2 * math.pi))
    vDT, vWA, vRA, AN, CC, YR, XR, TM, ROW = (KG[k] for k in ("vDT", "vWA", "vRA", "AN", "CC", "YR", "XR", "TM", "ROW"))
    T = 8
    ARL, AIR = 16, 18
    RE, IM, T2, T3 = (20, 28), (22, 30), (24, 32), (26, 34)
    P = KG_PRM
    a.c("---- SSM K generation: powers")
    a(f"""
    v_lshl_add_u32 v{vWA}, v{L}, 3, s{sLBs}
    v_and_b32 v{T}, 31, v{L}
    v_mul_u32_u24 v{T}, {ROW}, v{T}
    v_lshrrev_b32 v{T+1}, 5, v{L}
    v_lshl_add_u32 v{T}, v{T+1}, 4, v{T}
    v_add_u32 v{vRA}, s{sLBs}, v{T}
    v_lshlrev_b32 v{vDT}, 16, v{P+4}
    v_lshlrev_b32 v{T}, 16, v{P}
    v_and_b32 v{T+1}, 0xffff0000, v{P}
    v_mul_f32 v{vDT}, {LOG2E:#x}, v{vDT}
    v_mul_f32 v{T}, {LOG2E:#x}, v{T}
    v_mul_f32 v{T+1}, {LOG2E:#x}, v{T+1}
    v_exp_f32 v{vDT}, v{vDT}
    v_exp_f32 v{T}, v{T}
    v_exp_f32 v{T+1}, v{T+1}
    v_lshlrev_b32 v{AIR}, 16, v{P+1}
    v_and_b32 v{AIR+1}, 0xffff0000, v{P+1}
    v_cvt_pk_bf16_f32 v{vDT}, v{vDT}, v{vDT}
    v_cvt_pk_bf16_f32 v{T}, v{T}, v{T+1}
    v_and_b32 v{vDT}, 0xffff0000, v{vDT}
    v_lshlrev_b32 v{ARL}, 16, v{T}
    v_and_b32 v{ARL+1}, 0xffff0000, v{T}
    v_mul_f32 v{ARL}, v{ARL}, v{vDT}
    v_mul_f32 v{ARL+1}, v{ARL+1}, v{vDT}
    v_mul_f32 v{AIR}, v{AIR}, v{vDT}
    v_mul_f32 v{AIR+1}, v{AIR+1}, v{vDT}
    v_mul_f32 v{ARL}, {f2u(-math.log2(math.e)):#x}, v{ARL}
    v_mul_f32 v{ARL+1}, {f2u(-math.log2(math.e)):#x}, v{ARL+1}
    v_mul_f32 v{AIR}, {INV2PI:#x}, v{AIR}
    v_mul_f32 v{AIR+1}, {INV2PI:#x}, v{AIR+1}
    """)
    for m in range(2):
        a(f"v_mul_f32 v{T+4+m}, {f2u(32.0):#x}, v{ARL+m}")
        a(f"v_mul_f32 v{T+6+m}, {f2u(32.0):#x}, v{AIR+m}")
    for m in range(2):
        a(f"v_exp_f32 v{T+m}, v{ARL+m}")
        a(f"v_fract_f32 v{T+2+m}, v{AIR+m}")
        a(f"v_exp_f32 v{T+4+m}, v{T+4+m}")
        a(f"v_fract_f32 v{T+6+m}, v{T+6+m}")
    for c in range(2):
        for m in range(2):
            a(f"v_cos_f32 v{RE[c]+m}, v{T+4*c+2+m}")
            a(f"v_sin_f32 v{IM[c]+m}, v{T+4*c+2+m}")
    a.c("scale for C: 2^(13 - exponent of max |C|)")
    a(f"""
    v_and_b32 v{CC}, 0x7fff7fff, v{P+2}
    v_and_b32 v{CC+1}, 0x7fff7fff, v{P+3}
    v_pk_max_i16 v{CC}, v{CC}, v{CC+1}
    """)
    for c in range(2):
        a(f"v_pk_mul_f32 {vr(RE[c],2)}, {vr(RE[c],2)}, {vr(T+4*c,2)}")
        a(f"v_pk_mul_f32 {vr(IM[c],2)}, {vr(IM[c],2)}, {vr(T+4*c,2)}")
    a(f"v_lshlrev_b32 v{CC+1}, 16, v{CC}")
    a(f"v_max_u32 v{CC}, v{CC}, v{CC+1}")

    def anchor(c, k):
        return [f"v_cvt_pk_f16_f32 v{AN+2*k+m}, v{RE[c]+m}, v{IM[c]+m}" for m in range(2)]

    def square(c):
        return [f"v_pk_mul_f32 {vr(T2[c],2)}, {vr(IM[c],2)}, {vr(IM[c],2)}",
                f"v_pk_add_f32 {vr(T3[c],2)}, {vr(RE[c],2)}, {vr(RE[c],2)}",
                f"v_pk_fma_f32 {vr(RE[c],2)}, {vr(RE[c],2)}, {vr(RE[c],2)}, {vr(T2[c],2)} neg_lo:[0,0,1] neg_hi:[0,0,1]",
                f"v_pk_mul_f32 {vr(IM[c],2)}, {vr(T3[c],2)}, {vr(IM[c],2)}"]

    red = [f"v_max_u32_dpp v{CC}, v{CC}, v{CC} row_ror:{n} row_mask:0xf bank_mask:0xf" for n in (8, 4, 2, 1)]
    for i in range(6):
        s0 = (anchor(0, i) + (square(0) if i < 4 else [])) if i < 5 else []
        s1 = anchor(1, 5 + i) + (square(1) if i < 5 else [])
        for k in range(max(len(s0), len(s1))):
            if k < len(s0): a(s0[k])
            if k < len(s1): a(s1[k])
        if i < 4:
            a(red[i])
    a(f"""
    v_readlane_b32 s42, v{CC}, 0
    v_readlane_b32 s43, v{CC}, 16
    v_readlane_b32 s44, v{CC}, 32
    v_readlane_b32 s45, v{CC}, 48
    v_lshlrev_b32 v{T}, 16, v{P+2}
    v_and_b32 v{T+1}, 0xffff0000, v{P+2}
    v_lshlrev_b32 v{T+2}, 16, v{P+3}
    v_and_b32 v{T+3}, 0xffff0000, v{P+3}
    s_max_u32 s42, s42, s43
    s_max_u32 s44, s44, s45
    s_max_u32 s42, s42, s44
    s_lshr_b32 s42, s42, 23
    s_max_u32 s42, s42, 14
    s_min_u32 s42, s42, 254
    s_sub_u32 s43, 267, s42
    s_lshl_b32 s43, s43, 23
    s_sub_u32 s42, s42, 13
    s_lshl_b32 s42, s42, 23
    v_mul_f32 v{T}, s43, v{T}
    v_mul_f32 v{T+1}, s43, v{T+1}
    v_mul_f32 v{T+2}, s43, v{T+2}
    v_mul_f32 v{T+3}, s43, v{T+3}
    v_cvt_pk_f16_f32 v{CC}, v{T}, -v{T+2}
    v_cvt_pk_f16_f32 v{CC+1}, v{T+1}, -v{T+3}
    v_add_f32 v{vDT}, v{vDT}, v{vDT}
    v_mul_f32 v{vDT}, s42, v{vDT}
    v_mov_b32 v{YR}, 0x3c00
    v_mov_b32 v{YR+1}, 0x3c00
    """)
    cnt = [0]

    def prod(d, w, k, conj):
        t = TM + 2 * (cnt[0] % 4)
        cnt[0] += 1
        neg = "neg_hi:[1,0,0]" if conj else "neg_lo:[1,0,0]"
        for m in range(2):
            a(f"v_pk_mul_f16 v{t+m}, v{w+m}, v{AN+2*k+m} op_sel:[0,0] op_sel_hi:[1,0]")
        for m in range(2):
            a(f"v_pk_fma_f16 v{d+m}, v{w+m}, v{AN+2*k+m}, v{t+m} op_sel:[1,1,0] op_sel_hi:[0,1,1] {neg}")

    Y = {0: YR}
    for b in range(5):
        Y[1 << b] = AN + 2 * (3 + b)
    X = {0: CC}
    plan = ((256, 0, 8), (512, 0, 9), (1024, 0, 10), (1, 0, 0), (2, 0, 1), (4, 0, 2), (8, 0, 3),
            (768, 256, 9), (3, 1, 1), (258, 256, 1), (1280, 256, 10), (1536, 512, 10), (1792, 768, 10),
            (5, 1, 2), (6, 2, 2), (7, 3, 2), (260, 256, 2), (262, 258, 2), (264, 256, 3),
            (516, 512, 2), (520, 512, 3), (772, 768, 2), (776, 768, 3),
            (1032, 1024, 3), (1288, 1280, 3), (1544, 1536, 3), (1800, 1792, 3))
    yplan = [(j + (1 << b), j, 3 + b) for b in range(1, 5) for j in range(1, 1 << b)]
    wr = lambda src, r: a(f"ds_write_b64 v{vWA}, {vr(src,2)} offset:{ROW*r}")
    early = 'yearly' in EXP
    done = [0, 1, 2, 4, 8, 16]
    for (jj, j, k) in yplan:
        Y[jj] = YR + 2 * jj
        prod(Y[jj], Y[j], k, False)
        if early:
            for _ in range(2):
                if done:
                    r = done.pop(0); wr(Y[r], r)
        done.append(jj)
    for n, (p, sp, k) in enumerate(plan):
        X[p] = XR + 2 * n
        prod(X[p], X[sp], k, True)
        for x in extra[3 * n:3 * n + 3]:
            a(x)
        if early and done:
            r = done.pop(0); wr(Y[r], r)
        if early and n == 4:
            a("s_waitcnt lgkmcnt(0)")
        if early and 4 <= n < 12:
            for ks in (2 * (n - 4), 2 * (n - 4) + 1):
                a(f"ds_read_b128 {vr(YR+4*ks,4)}, v{vRA} offset:{32*ks}")
    if early:
        a("s_waitcnt lgkmcnt(0)")
    return X, Y


def ssm_kgen_mat(a, X, Y):
    vDT, vWA, vRA, AN, CC, YR, XR, TM, ROW = (KG[k] for k in ("vDT", "vWA", "vRA", "AN", "CC", "YR", "XR", "TM", "ROW"))
    T = 8
    FB, FA, ACC = YR, XR, 160
    P = KG_PRM
    a.c("---- SSM K generation: stage, multiply, expand")
    if 'yearly' not in EXP:
        for r in range(32):
            a(f"ds_write_b64 v{vWA}, {vr(Y[r],2)} offset:{ROW*r}")
        a("s_waitcnt lgkmcnt(0)")
        for ks in range(16):
            a(f"ds_read_b128 {vr(FB+4*ks,4)}, v{vRA} offset:{32*ks}")
        a("s_waitcnt lgkmcnt(0)")
    rows = kg_rows()
    for p, rr in rows.items():
        for r in rr:
            a(f"ds_write_b64 v{vWA}, {vr(X[p],2)} offset:{ROW*r}")
    a(f"""
    v_and_b32 v{T}, 31, v{L}
    v_lshrrev_b32 v{T+1}, 5, v{L}
    v_lshlrev_b32 v{T+2}, 4, v{T}
    v_lshl_add_u32 v{T+2}, v{T+1}, 9, v{T+2}
    v_sub_u32 v{T+2}, {4080-3072}, v{T+2}
    v_add_u32 v{T+4}, s{sLBs}, v{T+2}
    s_mov_b64 s[42:43], 1
    v_lshlrev_b32 v{T+1}, 16, v{P+5}
    v_cndmask_b32 v{T+1}, 0, v{T+1}, s[42:43]
    v_mov_b32 v{T}, 0
    v_lshl_add_u32 v{T+5}, v{L}, 2, s{sLBs}
    v_lshl_add_u32 v{T+6}, v{L}, 4, s{sLBs}
    s_mov_b32 vcc_lo, 0xaaaaaaaa
    s_mov_b32 vcc_hi, 0xaaaaaaaa
    s_waitcnt lgkmcnt(0)
    """)
    for k in range(8):
        a(f"ds_read_b128 {vr(FA+4*k,4)}, v{vRA} offset:{32*k}")
    for ks in range(16):
        a(f"s_waitcnt lgkmcnt({min(7, 15-ks)})")
        c = "0" if ks == 0 else vr(ACC, 16)
        a(f"v_mfma_f32_32x32x16_f16 {vr(ACC,16)}, {vr(FA+4*(ks%8),4)}, {vr(FB+4*ks,4)}, {c}")
        if ks + 8 < 16:
            a(f"ds_read_b128 {vr(FA+4*(ks%8),4)}, v{vRA} offset:{32*(ks+8)}")
    a.c("u and its zero pad into LDS (staging area is free now)")
    a("s_waitcnt vmcnt(0)")
    for i in range(4):
        a(f"ds_write_b128 v{T+6}, {vr(U_R+4*i,4)} offset:{U_OFF+480+1024*i}")
    a(f"""
    ds_write_b32 v{T+5}, v{T} offset:{U_OFF}
    s_mov_b32 exec_hi, 0x00ffffff
    ds_write_b32 v{T+5}, v{T} offset:{U_OFF+256}
    s_mov_b64 exec, 0xff
    ds_write_b32 v{T+5}, v{T} offset:{KA_OFF+4096}
    s_mov_b64 exec, -1
    s_nop 1
    """)
    a.c("expand to the two reversed K copies")
    a(f"v_fma_f32 v{ACC}, v{ACC}, v{vDT}, v{T+1}")
    for i in range(1, 16):
        a(f"v_mul_f32 v{ACC+i}, v{ACC+i}, v{vDT}")
    a(f"v_cndmask_b32 v{T+2}, v{ACC+12}, v{ACC+13}, vcc")
    a(f"v_cndmask_b32 v{T+3}, v{ACC+14}, v{ACC+15}, vcc")
    pats = [[ACC + e for e in range(9)],
            [ACC + 9] * 3 + [ACC + 10] * 3 + [ACC + 11] * 3,
            [ACC + 12] * 4 + [T + 2] + [ACC + 13] * 4,
            [ACC + 14] * 4 + [T + 3] + [ACC + 15] * 4]
    for q, k in enumerate(pats):
        for cp in range(2):
            d = FB + (q * 2 + cp) * 4
            for i in range(4):
                hi = 7 - 2 * i + cp
                a(f"v_cvt_pk_bf16_f32 v{d+i}, v{k[hi]}, v{k[hi-1]}")
            a(f"ds_write_b128 v{T+4}, {vr(d,4)} offset:{(KB_OFF if cp else KA_OFF) + 3072 - 1024*q}")
    a(f"""
    v_cvt_pk_bf16_f32 v{T+1}, v{ACC}, v{T}
    v_cndmask_b32 v{T+1}, 0, v{T+1}, s[42:43]
    s_mov_b64 exec, 0xff
    ds_write_b32 v{T+5}, v{T+1} offset:{KB_OFF+4096}
    s_mov_b64 exec, -1
    """)


def ssm_load_u(a):
    a(f"""
    v_lshrrev_b32 v4, 4, v{L}
    v_lshlrev_b32 v4, 14, v4
    v_and_b32 v5, 15, v{L}
    v_lshl_add_u32 v4, v5, 4, v4
    s_lshl_b32 s{S_T}, s{sCG}, 18
    s_lshl2_add_u32 s{S_T+1}, s{sTBQ}, s{S_WAVE}
    s_lshl_b32 s{S_T+1}, s{S_T+1}, 8
    s_add_u32 s{S_T+2}, s{S_T}, s{S_T+1}
    s_add_u32 s{S_T}, s{S_T+2}, {WS_UT}
    """)
    for i in range(4):
        a(f"buffer_load_dwordx4 {vr(U_R+4*i,4)}, v4, {sr(S_WS,4)}, s{S_T} offen{SC}")
        if i < 3:
            a(f"s_add_u32 s{S_T}, s{S_T}, 65536")


CV_T, CV_UB, CV_KB, CV_ACC = 202, 206, 208, 4
CV_HI_A, CV_HI_B = 48, 64
CV_LO = (80, 112)


def ssm_conv_pre(a):
    T, UB, KBs, ACC = CV_T, CV_UB, CV_KB, CV_ACC
    a(f"""
    v_lshrrev_b32 v{T+3}, 4, v{L}
    v_and_b32 v{T+1}, 15, v{L}
    v_lshlrev_b32 v{UB}, 5, v{T+1}
    v_lshl_add_u32 v{UB}, v{T+3}, 4, v{UB}
    v_add_u32 v{UB}, s{sLBs}, v{UB}
    v_add_u32 v{UB}, {U_OFF+480-32-64}, v{UB}
    v_lshlrev_b32 v{T+3}, 4, v{T+3}
    v_lshlrev_b32 v{T+5}, 1, v{T+1}
    v_sub_u32 v{T+3}, v{T+3}, v{T+5}
    v_add_u32 v{T+3}, s{sLBs}, v{T+3}
    s_mov_b32 vcc_lo, 0xaaaaaaaa
    s_mov_b32 vcc_hi, 0xaaaaaaaa
    v_mov_b32 v{T+5}, {KB_OFF+4064-512-64}
    v_mov_b32 v{KBs}, {KA_OFF+4062-512-64}
    v_cndmask_b32 v{T+5}, v{T+5}, v{KBs}, vcc
    v_add_u32 v{KBs}, v{T+3}, v{T+5}
    v_subrev_u32 v{KBs+1}, 1024, v{KBs}
    v_subrev_u32 v{KBs+2}, 2048, v{KBs}
    v_subrev_u32 v{KBs+3}, 3072, v{KBs}
    """)


def ssm_conv(a):
    sC = 41
    T, UB, KBs, ACC = CV_T, CV_UB, CV_KB, CV_ACC
    a.c("---- SSM conv")
    for i in range(32):
        a(f"v_mov_b32 v{ACC+i}, 0")
    a(f"s_mov_b32 s{sC}, 4")
    a("s_waitcnt lgkmcnt(0)")

    def af(par, m):
        return CV_LO[par] + 4 * m if m < 4 else CV_HI_A + 4 * (m - 4)

    def bf(par, i):
        return CV_LO[par] + 16 + 4 * i if i < 4 else CV_HI_B + 4 * (i - 4)

    def rd(par, n):
        base = KBs + n // 2
        o = (128 if n % 2 == 0 else 0) + (16 if par == 0 else 0)
        return [f"ds_read2_b32 {vr(af(par,n),2)}, v{base} offset0:{o} offset1:{o+1}",
                f"ds_read2_b32 {vr(af(par,n)+2,2)}, v{base} offset0:{o+2} offset1:{o+3}",
                f"ds_read_b128 {vr(bf(par,n),4)}, v{UB} offset:{512*n + (64 if par == 0 else 0)}"]

    adv_lo = [f"v_subrev_u32 v{r}, 128, v{r}" for r in (UB, KBs, KBs + 1, KBs + 2, KBs + 3)]
    for n in range(4):
        for x in rd(0, n):
            a(x)
    loop = a.label("cv_loop")
    a(".p2align 3")
    a(f"{loop}:")
    for par in range(2):
        for n in range(8):
            a("s_waitcnt lgkmcnt(9)")
            pairs = [(n, i) for i in range(n + 1) if n + i <= 7] + [(m, n) for m in range(n) if m + n <= 7]
            nxt = rd(par, n + 4) if n < 4 else rd(1 - par, n - 4)
            if par == 1 and n == 4:
                nxt = adv_lo + nxt
            per = (len(nxt) + len(pairs) - 1) // len(pairs)
            for k, (m, i) in enumerate(pairs):
                acc = ACC + 4 * (m + i)
                a(f"v_mfma_f32_16x16x32_bf16 {vr(acc,4)}, {vr(af(par,m),4)}, {vr(bf(par,i),4)}, {vr(acc,4)}")
                for x in nxt[k * per:(k + 1) * per]:
                    a(x)
    a(f"""
    s_sub_u32 s{sC}, s{sC}, 1
    s_cmp_lg_u32 s{sC}, 0
    s_cbranch_scc1 {loop}
    """)
    a.c("store yT")
    a(f"""
    v_bfe_u32 v{T}, v{L}, 3, 1
    v_lshlrev_b32 v{T}, 14, v{T}
    v_and_b32 v{T+1}, 7, v{L}
    v_lshl_add_u32 v{T}, v{T+1}, 5, v{T}
    v_lshrrev_b32 v{T+1}, 4, v{L}
    v_lshl_add_u32 v{T}, v{T+1}, 3, v{T}
    s_add_u32 s{S_T}, s{S_T+2}, {WS_YT}
    s_waitcnt lgkmcnt(0)
    """)
    for i in range(8):
        a(f"v_cvt_pk_bf16_f32 v{CV_HI_A+2*i}, v{ACC+4*i}, v{ACC+4*i+1}")
        a(f"v_cvt_pk_bf16_f32 v{CV_HI_A+2*i+1}, v{ACC+4*i+2}, v{ACC+4*i+3}")
        a(f"buffer_store_dwordx2 {vr(CV_HI_A+2*i,2)}, v{T}, {sr(S_WS,4)}, s{S_T} offen{SC}")
        if i < 7:
            a(f"s_add_u32 s{S_T}, s{S_T}, 32768")


def kd(name):
    return f""".p2align 6
.amdhsa_kernel {name}
  .amdhsa_next_free_vgpr 256
  .amdhsa_next_free_sgpr 102
  .amdhsa_accum_offset 256
  .amdhsa_group_segment_fixed_size 0
  .amdhsa_kernarg_size 104
  .amdhsa_user_sgpr_count 2
  .amdhsa_user_sgpr_kernarg_segment_ptr 1
  .amdhsa_system_sgpr_workgroup_id_x 1
.end_amdhsa_kernel
"""


CODE_BYTES = 32 * 1024


def build():
    a = A()
    hdr = open(f"cdna_kernels/{NAME}.s.ref").read().split("; Override launch")[0]
    hdr += f"; @launch grid=({N_MAIN+N_SSM},1,1) block=(256,1,1) lds={LDS_BYTES}\n"
    a('.amdgcn_target "amdgcn-amd-amdhsa--gfx950"')
    a(".text")
    name = NAME + "_kernel"
    a(f".globl {name}")
    a(".p2align 8")
    a(f".type {name},@function")
    a(f"{name}:")
    ssm, end0 = a.label("ssm"), a.label("end")
    stamp_reset()
    stamp(a, False)
    a("v_lshrrev_b32 v2, 6, v0")
    a(f"v_and_b32 v{L}, 63, v0")
    if MAINFIRST:
        a(f"s_cmp_ge_u32 s2, {N_MAIN}")
        a(f"v_readfirstlane_b32 s{S_WAVE}, v2")
        a(f"s_cbranch_scc1 {ssm}")
    else:
        a(f"s_cmp_lt_u32 s2, {N_SSM}")
        a(f"v_readfirstlane_b32 s{S_WAVE}, v2")
        a(f"s_cbranch_scc1 {ssm}")
        a(f"s_sub_u32 s2, s2, {N_SSM}")
        a(f"s_cmp_ge_u32 s2, {N_MAIN}")
        a(f"s_cbranch_scc1 {end0}")
    for base, off in ((S_X, 0), (S_W, 8), (S_WS, 96), (S_WO, 16), (S_OUT, 80), (S_DBG, 88)):
        a(f"s_load_dwordx2 {sr(base,2)}, s[0:1], {off}")
    for base, n in ((S_X, 2621440), (S_W, 2457600), (S_WO, 819200), (S_OUT, 5242880), (S_DBG, 256), (S_WS, WS_SIZE)):
        srd(a, base, n)
    if 'mainprio' in EXP:
        a("s_setprio 3")
    idle, done = phase_g1(a)
    at_pre(a)
    a("s_waitcnt vmcnt(0)")
    wait_cleared(a, 2)
    a("s_barrier")
    nod, nof = a.label("no_rd"), a.label("no_fl")
    a(f"s_cmp_lg_u32 s{S_WAVE}, 0")
    a(f"s_cbranch_scc1 {nof}")
    set_flag(a, S_FG1, 2)
    a(f"{nof}:")
    stamp(a)
    a(f"s_cmp_lt_u32 s{S_WAVE}, 2")
    a(f"s_cbranch_scc1 {nod}")
    for g in wo_round([WO_R_D[0], WO_R_D[0], WO_R_D[0], WO_R_D[1]]):
        a(g)
    a(f"{nod}:")
    a("s_mov_b64 exec, s[34:35]")
    poll_flags(a, V_PG1, 2)
    stamp(a)
    slow, back = phase_at(a)
    for j in range(2):
        for x in op_wreads(j, WPRE + 20 * j):
            a(x)
    a(f"s_mul_i32 s40, s{sHP}, {F_SP}")
    a(f"s_add_u32 s40, s40, {F_O}")
    op_pre(a)
    a("s_waitcnt vmcnt(0) lgkmcnt(0)")
    a("s_barrier")
    stamp(a)
    w0, join = a.label("op_w0"), a.label("op_join")
    a(f"s_cmp_eq_u32 s{S_WAVE}, 0")
    a(f"s_cbranch_scc1 {w0}")
    for r in range(3):
        g3 = WO_LATE[3 * r:3 * r + 3]
        for g in wo_round([g3[0]] + g3):
            a(g)
    a(f"s_branch {join}")
    a(f"{w0}:")
    set_flag(a, S_FO, 2)
    spin(a, f"s_load_dwordx4 s[36:39], {sr(S_WS,2)}, s40 glc", all16(36), 1)
    a(f"{join}:")
    a("s_barrier")
    stamp(a)
    phase_op(a)
    stamp_flush(a, True)
    a(f"{end0}:")
    a("s_endpgm")
    a(f"{ssm}:")
    if MAINFIRST:
        a(f"s_sub_u32 s2, s2, {N_MAIN}")
        a(f"s_cmp_ge_u32 s2, {N_SSM}")
        a(f"s_cbranch_scc1 {end0}")
    stamp_reset(1)
    if 'ssmprio' in EXP:
        a("s_setprio 1")
    ssm_start(a, CODE_BYTES)
    if 'nossm' in EXP:
        a("s_endpgm")
    a(f"""
    s_add_u32 s36, s{sG}, {0 if MAINFIRST else N_MAIN-N_SSM}
    s_and_b32 s37, s36, 1
    s_lshl_b32 s37, s37, 3
    s_bfe_u32 s38, s36, 0x30003
    s_add_u32 s37, s37, s38
    s_bfe_u32 s38, s36, 0x20001
    s_lshl_b32 s38, s38, 2
    s_lshr_b32 s39, s36, 6
    s_add_u32 s38, s38, s39
    s_lshl4_add_u32 s37, s38, s37
    s_lshl_b32 s37, s37, 7
    s_add_u32 s57, s37, {F_G1}
    s_lshl_b32 s36, s36, 7
    s_add_u32 s56, s36, {F_H}
    s_lshl_b32 s52, s{S_WAVE}, 28
    s_or_b32 s52, s52, s56
    """)
    warm = ssm_u_warm(a)
    ssm_param_wait(a)
    stamp(a)
    X, Y = ssm_kgen_valu(a, warm)
    stamp(a)
    ssm_u_loads(a)
    ssm_t1(a)
    a(f"""
    v_mov_b32 v3, 0
    s_mov_b64 exec, 1
    buffer_store_dword v3, v3, {sr(S_WS,4)}, s52 offen sc1
    s_mov_b64 exec, -1
    """)
    ssm_conv_pre(a)
    j1 = a.label("ssm_j1")
    a("s_waitcnt vmcnt(0)")
    stamp(a)
    a("s_barrier")
    a(f"s_cmp_lg_u32 s{S_WAVE}, 0")
    a(f"s_cbranch_scc1 {j1}")
    a(f"v_mov_b32 v3, {DBG_CLR}")
    a(f"buffer_load_dword v2, v3, {sr(S_DBG,4)}, 0 offen sc1")
    a("s_waitcnt vmcnt(0)")
    wait_cleared(a, 2)
    set_flag(a, 63, 2)
    if 'nohint' not in EXP:
        a.c("scheduling hint: the main workgroup that normally shares this CU is about to leave its GEMM loop")
        spin(a, f"s_load_dword s3, {sr(S_WS,2)}, s56 glc\ns_load_dword s4, {sr(S_WS,2)}, s57 glc", "s_or_b32 s3, s3, s4\ns_cmp_eq_u32 s3, 1", 4)
    spin(a, f"s_load_dwordx4 s[44:47], {sr(S_WS,2)}, s62 glc", all16(44), 2)
    a(f"{j1}:")
    a("s_barrier")
    stamp(a)
    ssm_load_u(a)
    ssm_kgen_mat(a, X, Y)
    stamp(a)
    ssm_conv(a)
    stamp(a)
    j2 = a.label("ssm_j2")
    a("s_waitcnt vmcnt(0)")
    a("s_barrier")
    a(f"s_cmp_lg_u32 s{S_WAVE}, 0")
    a(f"s_cbranch_scc1 {j2}")
    set_flag(a, 59, 2)
    a(f"s_add_u32 s62, s62, {F_Y-F_U}")
    spin(a, f"s_load_dwordx4 s[44:47], {sr(S_WS,2)}, s62 glc", all16(44), 8)
    a(f"{j2}:")
    a("s_barrier")
    stamp(a)
    ssm_t2(a)
    if STAMPS:
        a(f"s_add_u32 s2, s2, {N_MAIN}")
    stamp_flush(a)
    a("s_endpgm")
    at_slow(a, slow, back)
    g1_idle(a, idle, done)
    a("code_end:")
    a(f".fill ({CODE_BYTES} - (code_end - {name})) / 4, 4, 0xbf810000")
    a('.section .rodata,"a"')
    return hdr + a.text() + kd(name)


if __name__ == "__main__":
    path = sys.argv[2] if len(sys.argv) > 2 else f"cdna_kernels/{NAME}.s"
    if len(sys.argv) > 3 and sys.argv[3] in ("stamps", "cyc"):
        STAMPS = True
        CYC = sys.argv[3] == "cyc"
    txt = build()
    open(path, "w").write(txt)
    print("wrote", path, len(txt), "bytes")
```

```python
import sys

HEAD = """.amdgcn_target "amdgcn-amd-amdhsa--gfx950"
.text
"""

def kernel(name, body, iters=200, pre="", vgpr=128, lds=0):
    return f"""
.globl {name}
.p2align 8
.type {name},@function
{name}:
    s_load_dwordx2 s[4:5], s[0:1], 0
    v_lshrrev_b32 v1, 6, v0
    v_and_b32 v2, 63, v0
    s_nop 1
    v_readfirstlane_b32 s8, v1
{pre}
    s_waitcnt lgkmcnt(0)
    s_barrier
    s_mov_b32 s10, {iters}
    s_memtime s[12:13]
    s_waitcnt lgkmcnt(0)
.p2align 6
{name}_loop:
{body}
    s_sub_u32 s10, s10, 1
    s_cmp_lg_u32 s10, 0
    s_cbranch_scc1 {name}_loop
    s_memtime s[14:15]
    s_waitcnt lgkmcnt(0) vmcnt(0)
    s_sub_u32 s14, s14, s12
    s_subb_u32 s15, s15, s13
    s_lshl_b32 s9, s2, 4
    s_add_u32 s9, s9, s8
    s_lshl_b32 s9, s9, 2
    v_mov_b32 v3, s9
    v_mov_b32 v4, s14
    v_cmp_eq_u32 vcc, 0, v2
    s_and_saveexec_b64 s[16:17], vcc
    global_store_dword v3, v4, s[4:5]
    s_waitcnt vmcnt(0)
    s_endpgm
"""

def kd(name, vgpr=128):
    return f"""
.amdhsa_kernel {name}
  .amdhsa_next_free_vgpr {vgpr}
  .amdhsa_next_free_sgpr 32
  .amdhsa_accum_offset {vgpr}
  .amdhsa_group_segment_fixed_size 0
  .amdhsa_kernarg_size 8
  .amdhsa_user_sgpr_count 2
  .amdhsa_user_sgpr_kernarg_segment_ptr 1
  .amdhsa_system_sgpr_workgroup_id_x 1
.end_amdhsa_kernel
"""

def meta(names, vgpr=128):
    s = ".amdgpu_metadata\n---\namdhsa.version: [1, 2]\namdhsa.kernels:\n"
    for n in names:
        s += f"""  - .name: {n}
    .symbol: {n}.kd
    .kernarg_segment_size: 8
    .kernarg_segment_align: 8
    .group_segment_fixed_size: 0
    .private_segment_fixed_size: 0
    .wavefront_size: 64
    .sgpr_count: 32
    .vgpr_count: {vgpr}
    .max_flat_workgroup_size: 1024
    .args:
      - {{.name: kernargs, .size: 8, .offset: 0, .value_kind: by_value}}
"""
    s += "...\n.end_amdgpu_metadata\n"
    return s

def build(kernels, path, vgpr=128):
    s = HEAD
    for n, (b, p) in kernels.items():
        s += kernel(n, b, pre=p)
    s += '.section .rodata,"a"\n'
    for n in kernels:
        s += ".p2align 6\n" + kd(n, vgpr)
    s += meta(list(kernels), vgpr)
    open(path, "w").write(s)
```

```python
from mb_gen import build
import mb_gen
K = {}
init = "\n".join(f"    v_mov_b32 v{i}, 0.5" for i in range(8, 128))
init += "\n    v_lshlrev_b32 v5, 4, v2\n    s_waitcnt lgkmcnt(0)\n    s_mov_b32 s20, s4\n    s_mov_b32 s21, s5\n    s_mov_b32 s22, 16384\n    s_mov_b32 s23, 0x20000\n    s_mov_b32 s24, 0\n    s_mov_b32 m0, 0\n"
def half(extra):
    pos = {0: 0, 7: 1, 14: 2, 19: 3, 26: 4, 31: 5, 39: 6}
    V = []
    for g in range(4):
        V += [f"    v_exp_f32 v{48+(8*g+i)%16}, v{64+(8*g+i)%16}" for i in range(8)]
        V += [f"    v_cvt_pk_bf16_f32 v{100+i}, v{110+2*i}, v{111+2*i}" for i in range(4)]
    L = []
    for i, x in enumerate(V):
        if i in pos:
            k = pos[i]
            L.append(f"    v_mfma_f32_32x32x16_bf16 v[{16+16*(k%2)}:{31+16*(k%2)}], v[80:83], v[84:87], v[{16+16*(k%2)}:{31+16*(k%2)}]")
            if k in extra: L.append("    " + extra[k])
        L.append(x)
        if i in pos and ('e', pos[i]) in extra: L.append("    " + extra[('e', pos[i])])
    return "\n".join(L)
def body(ex): return "\n".join([half(ex)] * 8)
bl = lambda r: f"buffer_load_dwordx4 v[{r}:{r+3}], v5, s[20:23], s24 offen"
gl = lambda r: f"global_load_dwordx4 v[{r}:{r+3}], v5, s[4:5]"
K["none"] = (body({}), init)
K["wait"] = (body({1: "s_waitcnt vmcnt(6)", 4: "s_add_u32 s25, s25, 0x2200"}), init)
K["buf2"] = (body({1: "s_waitcnt vmcnt(6)", 2: bl(88), 3: bl(92)}), init)
K["buf2sc1"] = (body({1: "s_waitcnt vmcnt(6)", 2: bl(88) + " sc1", 3: bl(92) + " sc1"}), init)
K["glb2"] = (body({1: "s_waitcnt vmcnt(6)", 2: gl(88), 3: gl(92)}), init)
K["buf2e"] = (body({1: "s_waitcnt vmcnt(6)", ('e', 2): bl(88), ('e', 3): bl(92)}), init)
K["buf2x2"] = (body({1: "s_waitcnt vmcnt(6)", 2: "buffer_load_dwordx2 v[88:89], v5, s[20:23], s24 offen", 3: "buffer_load_dwordx2 v[92:93], v5, s[20:23], s24 offen"}), init)
K["buf2x1"] = (body({1: "s_waitcnt vmcnt(6)", 2: "buffer_load_dword v88, v5, s[20:23], s24 offen", 3: "buffer_load_dword v92, v5, s[20:23], s24 offen"}), init)
K["dma2"] = (body({1: "s_waitcnt vmcnt(6)", 2: "buffer_load_dwordx4 v5, s[20:23], s24 offen lds", 3: "buffer_load_dwordx4 v5, s[20:23], s24 offen lds"}), init)
K["ds2"] = (body({1: "s_waitcnt lgkmcnt(2)", 2: "ds_read_b128 v[88:91], v5", 3: "ds_read_b128 v[92:95], v5"}), init)
K["buf2off"] = (body({1: "s_waitcnt vmcnt(6)", 2: "buffer_load_dwordx4 v[88:91], off, s[20:23], s24", 3: "buffer_load_dwordx4 v[92:95], off, s[20:23], s24"}), init)
K["buf2same"] = (body({1: "s_waitcnt vmcnt(6)", 2: bl(88) + "\n    " + bl(92)}), init)
build(K, "mb4.s")
open("mb4.names", "w").write("\n".join(K))
```
